```python
import torch

def _softmax(x, axis=-1):
    return torch.softmax(x, dim=axis)
def _gelu(x):
    return torch.nn.functional.gelu(x, approximate="tanh")
def _silu(x):
    return torch.nn.functional.silu(x)
def _sigmoid(x):
    return torch.sigmoid(x)
def _layernorm(x, axis=-1, eps=1e-5):
    m = x.mean(dim=axis, keepdim=True)
    v = x.var(dim=axis, keepdim=True, unbiased=False)
    return (x - m) / torch.sqrt(v + eps)
def _scatter_add(tgt, idx, src, axis=0):
    return tgt.clone().index_add_(axis, idx, src)
def _segment_sum(src, seg, n):
    out = torch.zeros((n,) + src.shape[1:], dtype=src.dtype)
    return out.index_add_(0, seg, src)
def _pad(x, pw):
    flat = tuple(v for pair in reversed(pw) for v in pair)
    return torch.nn.functional.pad(x, flat)

kernel_name = 'parallel_sum__sliding_block_cached__dense_activation_silu__decode'

def setup_inputs():

    _w = (lambda a: (lambda t: t.to(torch.bfloat16) if t.is_floating_point() else t)(torch.as_tensor(a)))
    def _A_setup():
        B, Sq, D = 1, 1, 512
        Hq, Hkv, Sk, Dh = 32, 8, 65536, 128
        assert Hq % Hkv == 0, (Hq, Hkv)
        return {
            "x": _w((lambda *s: torch.randn(*s, dtype=torch.bfloat16) * 0.05)(B, Sq, D)),
            "k_cache": _w((lambda *s: torch.randn(*s, dtype=torch.bfloat16) * 3.2)(B, Hkv, Sk, Dh)),
            "v_cache": _w((lambda *s: torch.randn(*s, dtype=torch.bfloat16) * 0.8)(B, Hkv, Sk, Dh)),
            "wq": _w((lambda *s: torch.randn(*s, dtype=torch.bfloat16) * 3.2)(D, Hq * Dh) * (D ** -0.5)),
            "wo": _w((lambda *s: torch.randn(*s, dtype=torch.bfloat16) * 0.8)(Hq * Dh, D) * ((Hq * Dh) ** -0.5)),
        }
    _A_in = _A_setup()

    def _B_setup():
        B, S, D, F = 1, 1, 512, 1792
        return {
            "x": _w((lambda *s: torch.randn(*s, dtype=torch.bfloat16) * 0.05)(B, S, D)),
            "w1": _w((lambda *s: torch.randn(*s, dtype=torch.bfloat16) * 3.2)(D, F) * (D ** -0.5)),
            "w2": _w((lambda *s: torch.randn(*s, dtype=torch.bfloat16) * 0.4)(F, D) * (F ** -0.5)),
        }
    _B_in = _B_setup()

    return {
        "A_x": _A_in["x"],
        "A_k_cache": _A_in["k_cache"],
        "A_v_cache": _A_in["v_cache"],
        "A_wq": _A_in["wq"],
        "A_wo": _A_in["wo"],
        "B_x": _B_in["x"],
        "B_w1": _B_in["w1"],
        "B_w2": _B_in["w2"],
    }

def reference(A_x, A_k_cache, A_v_cache, A_wq, A_wo, B_x, B_w1, B_w2):
    def _A_ref(x, k_cache, v_cache, wq, wo):
        B, Sq, D = x.shape
        Hq, Dh = 32, 128
        Hkv, Sk = k_cache.shape[1], k_cache.shape[2]
        W = min(4096, max(256, Sk // 4))
        rep = Hq // Hkv
        q = (lambda x, *d: x.permute(*d))((x @ wq).reshape(B, Sq, Hq, Dh), 0, 2, 1, 3)
        k = (lambda x, n, axis: torch.repeat_interleave(x, n, dim=axis))(k_cache[:, :, Sk - W:, :], rep, axis=1)
        v = (lambda x, n, axis: torch.repeat_interleave(x, n, dim=axis))(v_cache[:, :, Sk - W:, :], rep, axis=1)
        scores = torch.einsum("bhqd,bhkd->bhqk", q, k) * (Dh ** -0.5)
        p = _softmax(scores, axis=-1)
        o = torch.einsum("bhqk,bhkd->bhqd", p, v)
        return (lambda x, *d: x.permute(*d))(o, 0, 2, 1, 3).reshape(B, Sq, Hq * Dh) @ wo

    def _B_ref(x, w1, w2):
        h = torch.einsum("bsd,df->bsf", x, w1)
        h = _silu(h)
        out = torch.einsum("bsf,fd->bsd", h, w2)
        return out

    x = A_x
    xn = _layernorm(x, axis=-1)
    return x + _A_ref(xn, A_k_cache, A_v_cache, A_wq, A_wo) + _B_ref(xn, B_w1, B_w2)
```

```python
import re

TRANS = ("v_exp_f32", "v_log_f32", "v_rcp_f32", "v_rsq_f32", "v_sqrt_f32", "v_sin_f32", "v_cos_f32")
_reg = re.compile(r"^(-?)(abs\()?([vsa])(\d+|\[(\d+):(\d+)\])\)?$")


def regs_of(tok):
    tok = tok.strip()
    if tok in ("vcc",):
        return [("s", 106), ("s", 107)]
    if tok == "exec":
        return [("s", 126), ("s", 127)]
    if tok == "m0":
        return [("s", 124)]
    m = _reg.match(tok)
    if not m:
        return []
    k = m.group(3)
    if m.group(5) is not None:
        return [(k, i) for i in range(int(m.group(5)), int(m.group(6)) + 1)]
    return [(k, int(m.group(4)))]


def split_ops(s):
    out, depth, cur = [], 0, ""
    for ch in s:
        if ch in "[(":
            depth += 1
        if ch in "])":
            depth -= 1
        if ch == "," and depth == 0:
            out.append(cur.strip())
            cur = ""
        else:
            cur += ch
    if cur.strip():
        out.append(cur.strip())
    return out


class Asm:
    def __init__(self):
        self.lines = []
        self.pos = 0
        self.w = {}
        self.store_rd = {}
        self.mfma_c = {}
        self.maxv = 0
        self.maxs = 0
        self.nops = 0

    def raw(self, text):
        self.lines.append(text)

    def comment(self, text):
        self.lines.append("    ; " + text)

    def label(self, name):
        self.lines.append(name + ":")

    def forget(self):
        self.w.clear(); self.store_rd.clear(); self.mfma_c.clear()

    def nop(self, n):
        while n > 0:
            k = min(n, 16)
            self.lines.append("    s_nop %d" % (k - 1))
            self.pos += k
            self.nops += 1
            n -= k

    def __call__(self, text):
        text = text.strip()
        body = text.split(";")[0].strip()
        sp = body.split(None, 1)
        mn = sp[0]
        rest = sp[1] if len(sp) > 1 else ""
        ops = split_ops(rest)
        mods = ""
        if ops:
            last = ops[-1].split(None, 1)
            if len(last) > 1 and not last[0].endswith("("):
                ops[-1] = last[0]
                mods = last[1]
        is_mfma = mn.startswith("v_mfma")
        is_valu = mn.startswith("v_") and not is_mfma
        is_vmem = mn.startswith(("global_", "buffer_", "flat_"))
        is_ds = mn.startswith("ds_")
        is_salu = mn.startswith("s_")
        is_dpp = is_valu and bool(re.search(r"quad_perm|row_|wave_", mods))
        is_perml = mn.startswith("v_permlane")
        is_trans = mn.replace("_e32", "").replace("_e64", "") in TRANS
        is_dot = mn.startswith("v_dot")
        dst, src = [], []
        R = [regs_of(o) for o in ops]
        if is_mfma:
            dst = R[0]; src = R[1] + R[2] + R[3]
        elif is_valu:
            if is_perml:
                dst = R[0] + R[1]; src = R[0] + R[1]
            elif mn.startswith(("v_add_co", "v_sub_co", "v_addc_co", "v_subb_co")):
                dst = R[0] + R[1]; src = sum(R[2:], [])
            else:
                dst = R[0]; src = sum(R[1:], [])
                if mn.startswith(("v_fmac", "v_dot2c", "v_pk_fmac")) or is_dpp or "sdwa" in mn or mn.startswith("v_writelane"):
                    src = src + R[0]
                if mn.startswith("v_cndmask") and len(ops) == 3:
                    src = src + regs_of("vcc")
        elif is_vmem:
            if "load" in mn and "lds" not in mn:
                dst = R[0]; src = sum(R[1:], [])
                if "d16" in mn:
                    src = src + R[0]
            elif "atomic" in mn and "sc0" in mods:
                dst = R[0]; src = sum(R[1:], [])
            else:
                src = sum(R, [])
        elif is_ds:
            if mn.startswith(("ds_read", "ds_bpermute", "ds_permute", "ds_swizzle")) or "_rtn" in mn:
                dst = R[0]; src = sum(R[1:], [])
            else:
                src = sum(R, [])
        elif is_salu:
            if mn.startswith(("s_cmp", "s_cbranch", "s_branch", "s_waitcnt", "s_barrier", "s_nop", "s_sleep", "s_endpgm", "s_setprio", "s_bitcmp")):
                src = sum(R, [])
            else:
                dst = R[0] if R else []
                src = sum(R[1:], [])
                if "saveexec" in mn:
                    dst = dst + regs_of("exec")
        for k, i in dst + src:
            if k == "v": self.maxv = max(self.maxv, i)
            if k == "s" and i < 102: self.maxs = max(self.maxs, i)
        need = 0

        def req(reg, n, kinds):
            nonlocal need
            if reg in self.w:
                p, kind = self.w[reg]
                if kind in kinds:
                    need = max(need, n - (self.pos - p - 1))

        VAL = ("valu", "trans", "dot")
        for r in src:
            if r[0] == "v":
                if is_dpp: req(r, 2, VAL + ("mem",) * 0)
                if is_perml: req(r, 2, VAL)
                if is_mfma: req(r, 2, VAL)
                if is_valu and not is_trans: req(r, 1, ("trans",))
                if is_valu and is_trans: req(r, 1, ("trans",))
                if (is_vmem or is_ds or is_mfma): req(r, 1, ("trans",))
                if mn.startswith(("v_readlane", "v_readfirstlane")): req(r, 1, VAL)
                if not (is_dot and r in dst): req(r, 3, ("dot",))
                if r in self.w and self.w[r][1].startswith("mfma"):
                    p, kind = self.w[r]
                    passes = int(kind[4:])
                    n = {2: 5, 4: 8, 8: 12, 16: 20}[passes]
                    if is_mfma and r in R[3] and R[3] == R[0]:
                        n = 0 if passes >= 4 else 2
                    need = max(need, n - (self.pos - p - 1))
            if r[0] == "s":
                if is_valu or is_mfma:
                    req(r, 2, VAL)
                    if mn.startswith(("v_readlane", "v_writelane")): req(r, 4, VAL)
                if is_vmem: req(r, 5, VAL)
                if is_salu: req(r, 1, VAL)
                if r == ("s", 124) : pass
        for r in dst:
            if r[0] == "v":
                if r in self.w and self.w[r][1].startswith("mfma") and not (is_mfma and R[3] == R[0]):
                    p, kind = self.w[r]
                    passes = int(kind[4:])
                    n = {2: 5, 4: 8, 8: 12, 16: 20}[passes]
                    need = max(need, n - (self.pos - p - 1))
                if r in self.w and self.w[r][1] == "dot" and not is_dot:
                    need = max(need, 3 - (self.pos - self.w[r][0] - 1))
                if r in self.store_rd:
                    need = max(need, 2 - (self.pos - self.store_rd[r] - 1))
                if r in self.mfma_c and is_valu:
                    p, n = self.mfma_c[r]
                    need = max(need, n - (self.pos - p - 1))
        if is_dpp or is_mfma or is_perml or mn.startswith(("v_readlane", "v_readfirstlane")):
            for r in regs_of("exec"):
                req(r, 5, VAL)
        if need > 0:
            self.nop(need)
        self.lines.append("    " + text)
        if mn == "s_nop":
            self.pos += int(ops[0], 0) + 1
            return
        kind = "mem"
        if is_mfma:
            passes = 8 if "32x32" in mn else 4
            if "4x4" in mn: passes = 2
            kind = "mfma%d" % passes
            for r in R[3]:
                self.mfma_c[r] = (self.pos, {2: 1, 4: 3, 8: 7, 16: 15}[passes])
        elif is_valu:
            kind = "trans" if is_trans else ("dot" if is_dot else "valu")
        elif is_salu:
            kind = "salu"
        for r in dst:
            self.w[r] = (self.pos, kind)
        if is_vmem and ("store" in mn or "atomic" in mn) and re.search(r"x3|x4|x2", mn):
            for r in src:
                if r[0] == "v": self.store_rd[r] = self.pos
        self.pos += 1

    def text(self):
        return "\n".join(self.lines) + "\n"
```

```python
import sys, argparse
from asmlib import Asm

NAME = "parallel_sum__sliding_block_cached__dense_activation_silu__decode"
HEADER = open("cdna_kernels/%s.s.ref" % NAME).read().split("; Override launch")[0]

ap = argparse.ArgumentParser()
ap.add_argument("--stamps", action="store_true")
ap.add_argument("--out", default="cdna_kernels/%s.s" % NAME)
ap.add_argument("--nt", type=int, default=1)
ap.add_argument("--lds", type=int, default=12288)
args = ap.parse_args()
STAMPS = args.stamps
NT = " nt" if args.nt else ""

WS_GEN = 0x0
WS_Q = 0x1000
WS_ML = 0x8000
WS_O = 0x10000
WS_OUT = 0x110000
WS_STAMP = 0x400000
L_QP = 0
L_Q = 512
L_O = 2048
L_M = 10240
L_L = 10304

DPPALL = "row_mask:0xf bank_mask:0xf"
LOG2E = 0x3fb8aa3b
SCALE = 0x3db504f3
SPIN = 1 << 18

a = Asm()
nstamp = [0]
def stamp():
    if STAMPS:
        k = nstamp[0]; nstamp[0] += 1
        a("s_memrealtime s[%d:%d]" % (60 + 2 * k, 61 + 2 * k))
def stamp_reset(n):
    nstamp[0] = n
def stamp_flush():
    if STAMPS:
        n = nstamp[0]
        a("s_waitcnt lgkmcnt(0)")
        a("s_mov_b64 exec, -1")
        a("v_mov_b32 v2, 0")
        a("s_getreg_b32 s58, hwreg(HW_REG_XCC_ID)")
        a("s_getreg_b32 s59, hwreg(HW_REG_HW_ID)")
        for k in range(n):
            a("v_writelane_b32 v2, s%d, %d" % (60 + 2 * k, k))
        a("v_writelane_b32 v2, s58, 14")
        a("v_writelane_b32 v2, s59, 15")
        a("s_lshl_b32 s58, s2, 3")
        a("s_add_u32 s58, s58, s28")
        a("s_lshl_b32 s58, s58, 6")
        a("s_add_u32 s58, s58, 0x%x" % WS_STAMP)
        a("v_mbcnt_lo_u32_b32 v3, -1, 0")
        a("v_lshl_add_u32 v3, v3, 2, s58")
        a("s_mov_b64 exec, 0xffff")
        a("global_store_dword v3, v2, s[24:25]")

def bf16r(dst, src):
    a("v_cvt_pk_bf16_f32 %s, %s, %s" % (dst, src, src))
    a("v_and_b32 %s, 0xffff0000, %s" % (dst, dst))

def row_allreduce(op, regs):
    for sh in (8, 4, 2, 1):
        for r in regs:
            a("%s_dpp %s, %s, %s row_ror:%d %s" % (op, r, r, r, sh, DPPALL))

def cross_rows_allreduce(op, r, t):
    a("v_mov_b32 %s, %s" % (t, r))
    a("v_permlane16_swap_b32 %s, %s" % (r, t))
    a("%s %s, %s, %s" % (op, r, r, t))
    a("v_mov_b32 %s, %s" % (t, r))
    a("v_permlane32_swap_b32 %s, %s" % (r, t))
    a("%s %s, %s, %s" % (op, r, r, t))

def transpose_reduce8(acc):
    for d in range(4):
        a("v_permlane32_swap_b32 v%d, v%d" % (acc[d], acc[d + 4]))
    for d in range(4):
        a("v_add_f32 v%d, v%d, v%d" % (acc[d], acc[d], acc[d + 4]))
    for d in range(2):
        a("v_permlane16_swap_b32 v%d, v%d" % (acc[d], acc[d + 2]))
    for d in range(2):
        a("v_add_f32 v%d, v%d, v%d" % (acc[d], acc[d], acc[d + 2]))

def unpack(lo, hi, src):
    a("v_lshlrev_b32 v%d, 16, v%d" % (lo, src))
    a("v_and_b32 v%d, 0xffff0000, v%d" % (hi, src))

a("s_cmp_ge_u32 s2, 256")
a("s_cbranch_scc1 L_end")
stamp()
a("s_load_dwordx16 s[4:19], s[0:1], 0")
a("s_load_dwordx4 s[20:23], s[0:1], 64")
a("s_load_dwordx2 s[24:25], s[0:1], 80")
a("v_lshrrev_b32 v2, 6, v0")
a("v_and_b32 v1, 63, v0")
a("v_readfirstlane_b32 s28, v2")
a("s_and_b32 s26, s2, 7")
a("s_lshr_b32 s27, s2, 3")
a("s_cmp_ge_u32 s28, 4")
a("s_cbranch_scc1 L_att")

a("v_lshlrev_b32 v2, 4, v1")
a("v_lshrrev_b32 v10, 1, v1")
a("s_lshl_b32 s30, s28, 8")
a("v_lshl_add_u32 v3, v10, 3, s30")
a("s_lshl_b32 s30, s28, 20")
a("s_lshl_b32 s31, s26, 10")
a("s_add_u32 s30, s30, s31")
a("s_lshl_b32 s31, s27, 5")
a("s_add_u32 s30, s30, s31")
a("v_lshl_add_u32 v36, v10, 15, s30")
a("v_and_b32 v11, 1, v1")
a("v_lshl_add_u32 v36, v11, 4, v36")
a("v_add_u32 v37, 0x2000, v36")
a("v_add_u32 v38, 0x4000, v36")
a("v_add_u32 v39, 0x6000, v36")
a("s_min_u32 s32, s27, 27")
a("s_mul_i32 s33, s26, 224")
a("s_lshl_b32 s32, s32, 3")
a("s_add_u32 s33, s33, s32")
a("s_mul_i32 s30, s28, %d" % (128 * 3584))
a("s_lshl_b32 s31, s33, 1")
a("s_add_u32 s30, s30, s31")
a("v_mul_u32_u24 v40, %d, v1" % (2 * 3584))
a("v_add_u32 v40, s30, v40")
a("s_waitcnt lgkmcnt(0)")
a("global_load_dwordx4 v[4:7], v2, s[4:5]")
a("global_load_dwordx2 v[8:9], v3, s[4:5]")
for i in range(4):
    a("global_load_dwordx4 v[%d:%d], v%d, s[10:11]" % (12 + 4 * i, 15 + 4 * i, 36 + i))
a("global_load_dwordx4 v[28:31], v40, s[16:17]")
a("global_load_dwordx4 v[32:35], v40, s[16:17] offset:3584")
a("s_load_dword s29, s[24:25], 0x%x" % WS_GEN)
a("s_barrier")
stamp()
a("s_waitcnt vmcnt(7)")
for i in range(4):
    unpack(44 + 2 * i, 45 + 2 * i, 4 + i)
a("v_add_f32 v52, v44, v45")
a("v_add_f32 v53, v46, v47")
a("v_add_f32 v54, v48, v49")
a("v_add_f32 v55, v50, v51")
a("v_add_f32 v52, v52, v53")
a("v_add_f32 v54, v54, v55")
a("v_add_f32 v52, v52, v54")
row_allreduce("v_add_f32", ["v52"])
cross_rows_allreduce("v_add_f32", "v52", "v53")
a("v_mul_f32 v52, 0x3b000000, v52")
for i in range(8):
    a("v_sub_f32 v%d, v%d, v52" % (44 + i, 44 + i))
a("v_mul_f32 v53, v44, v44")
a("v_mul_f32 v54, v45, v45")
for i in range(2, 8, 2):
    a("v_fmac_f32 v53, v%d, v%d" % (44 + i, 44 + i))
    a("v_fmac_f32 v54, v%d, v%d" % (45 + i, 45 + i))
a("v_add_f32 v53, v53, v54")
row_allreduce("v_add_f32", ["v53"])
cross_rows_allreduce("v_add_f32", "v53", "v54")
a("v_mul_f32 v53, 0x3b000000, v53")
bf16r("v52", "v52")
bf16r("v53", "v53")
a("v_add_f32 v53, 0x3727c5ac, v53")
bf16r("v53", "v53")
a("v_sqrt_f32 v53, v53")
bf16r("v53", "v53")
a("v_rcp_f32 v53, v53")
a("s_waitcnt vmcnt(6)")
unpack(44, 45, 8)
unpack(46, 47, 9)
for i in range(4):
    a("v_sub_f32 v%d, v%d, v52" % (44 + i, 44 + i))
for i in range(0, 4, 2):
    a("v_cvt_pk_bf16_f32 v48, v%d, v%d" % (44 + i, 45 + i))
    unpack(44 + i, 45 + i, 48)
for i in range(4):
    a("v_mul_f32 v%d, v%d, v53" % (44 + i, 44 + i))
for i in range(0, 4, 2):
    a("v_cvt_pk_bf16_f32 v48, v%d, v%d" % (44 + i, 45 + i))
    unpack(44 + i, 45 + i, 48)
a("v_cmp_eq_u32 vcc, 1, v11")
a("v_cndmask_b32 v48, v44, v46, vcc")
a("v_cndmask_b32 v49, v45, v47, vcc")
QA = list(range(56, 64)); HA = list(range(64, 72))
for i in range(4):
    a("s_waitcnt vmcnt(%d)" % (5 - i))
    for c in range(4):
        unpack(72, 73, 12 + 4 * i + c)
        if i == 0:
            a("v_mul_f32 v%d, v72, v44" % QA[2 * c])
            a("v_mul_f32 v%d, v73, v44" % QA[2 * c + 1])
        else:
            a("v_fmac_f32 v%d, v72, v%d" % (QA[2 * c], 44 + i))
            a("v_fmac_f32 v%d, v73, v%d" % (QA[2 * c + 1], 44 + i))
stamp()
transpose_reduce8(QA)
for sh in (8, 4, 2):
    for r in QA[:2]:
        a("v_add_f32_dpp v%d, v%d, v%d row_ror:%d %s" % (r, r, r, sh, DPPALL))
a("v_lshrrev_b32 v41, 4, v1")
a("v_lshlrev_b32 v42, 5, v41")
a("v_lshl_add_u32 v43, v11, 7, v42")
a("s_lshl_b32 s30, s28, 2")
a("v_add_u32 v43, s30, v43")
a("ds_write2_b32 v43, v%d, v%d offset0:%d offset1:%d" % (QA[0], QA[1], L_QP // 4, L_QP // 4 + 4))
for i in range(2):
    a("s_waitcnt vmcnt(%d)" % (1 - i))
    for c in range(4):
        unpack(72, 73, 28 + 4 * i + c)
        if i == 0:
            a("v_mul_f32 v%d, v72, v48" % HA[2 * c])
            a("v_mul_f32 v%d, v73, v48" % HA[2 * c + 1])
        else:
            a("v_fmac_f32 v%d, v72, v49" % HA[2 * c])
            a("v_fmac_f32 v%d, v73, v49" % HA[2 * c + 1])
transpose_reduce8(HA)
row_allreduce("v_add_f32", ["v%d" % HA[0], "v%d" % HA[1]])
a("v_add_u32 v43, s30, v42")
a("ds_write2_b32 v43, v%d, v%d offset0:%d offset1:%d" % (HA[0], HA[1], L_QP // 4 + 64, L_QP // 4 + 68))
a("s_waitcnt lgkmcnt(0)")
a("s_add_u32 s29, s29, 1")
a("s_barrier")
stamp()
a("s_lshl_b32 s34, s26, 11")
a("s_add_u32 s34, s34, 0x%x" % WS_Q)
a("s_cmp_lg_u32 s28, 0")
a("s_cbranch_scc1 L_noqpub")
a("v_lshlrev_b32 v2, 5, v1")
a("v_and_b32 v2, 0xff, v2")
a("ds_read_b128 v[4:7], v2 offset:%d" % L_QP)
a("ds_read_b128 v[8:11], v2 offset:%d" % (L_QP + 16))
a("s_lshl_b32 s30, s27, 6")
a("s_add_u32 s30, s30, s34")
a("v_lshl_add_u32 v3, v1, 3, s30")
a("v_mov_b32 v13, s29")
a("s_waitcnt lgkmcnt(0)")
a("v_add_f32 v4, v4, v5")
a("v_add_f32 v6, v6, v7")
a("v_add_f32 v8, v8, v9")
a("v_add_f32 v10, v10, v11")
a("v_add_f32 v4, v4, v6")
a("v_add_f32 v8, v8, v10")
a("v_cvt_pk_bf16_f32 v12, v4, v8")
a("s_mov_b64 exec, 0xff")
a("global_store_dwordx2 v3, v[12:13], s[24:25] sc1")
a("s_mov_b64 exec, -1")
a.label("L_noqpub")
stamp()
a("s_lshl_b32 s30, s28, 9")
a("s_add_u32 s30, s30, s34")
a("v_lshl_add_u32 v3, v1, 3, s30")
a("s_mov_b32 s35, %d" % SPIN)
a.label("L_pollq")
a("global_load_dwordx2 v[4:5], v3, s[24:25] sc1")
a("s_sub_u32 s35, s35, 1")
a("s_cbranch_scc1 L_pollq_done")
a("s_waitcnt vmcnt(0)")
a("v_cmp_ne_u32 vcc, s29, v5")
a("s_cbranch_vccz L_pollq_done")
a("s_sleep 2")
a("s_branch L_pollq")
a.label("L_pollq_done")
a("s_waitcnt vmcnt(0)")
a("v_lshlrev_b32 v2, 2, v0")
a("ds_write_b32 v2, v4 offset:%d" % L_Q)
a("s_lshl_b32 s30, s26, 9")
a("s_lshr_b32 s31, s27, 3")
a("s_lshl_b32 s31, s31, 7")
a("s_add_u32 s30, s30, s31")
a("s_and_b32 s31, s27, 7")
a("s_add_u32 s30, s30, s31")
a("s_lshl_b32 s30, s30, 10")
a("s_lshl_b32 s31, s28, 8")
a("s_add_u32 s30, s30, s31")
a("v_and_b32 v42, 15, v1")
a("v_lshlrev_b32 v43, 4, v42")
a("v_lshl_add_u32 v36, v41, 15, v43")
a("v_add_u32 v36, s30, v36")
a("v_add_u32 v37, 0x2000, v36")
a("v_add_u32 v38, 0x4000, v36")
a("v_add_u32 v39, 0x6000, v36")
a("s_lshl_b32 s30, s33, 10")
a("s_add_u32 s30, s30, s31")
a("v_lshl_add_u32 v40, v41, 11, v43")
a("v_add_u32 v40, s30, v40")
a("s_waitcnt lgkmcnt(0)")
a("s_barrier")
stamp()
a("global_load_dwordx4 v[28:31], v40, s[18:19]" + NT)
a("global_load_dwordx4 v[32:35], v40, s[18:19] offset:1024" + NT)
for i in range(4):
    a("global_load_dwordx4 v[%d:%d], v%d, s[12:13]%s" % (12 + 4 * i, 15 + 4 * i, 36 + i, NT))
a("v_lshlrev_b32 v2, 5, v41")
a("ds_read_b128 v[4:7], v2 offset:%d" % (L_QP + 256))
a("ds_read_b128 v[8:11], v2 offset:%d" % (L_QP + 272))
a("s_waitcnt lgkmcnt(0)")
a("v_add_f32 v4, v4, v5")
a("v_add_f32 v6, v6, v7")
a("v_add_f32 v8, v8, v9")
a("v_add_f32 v10, v10, v11")
a("v_add_f32 v4, v4, v6")
a("v_add_f32 v8, v8, v10")
a("v_cvt_pk_bf16_f32 v6, v4, v8")
unpack(4, 5, 6)
for r in (4, 5):
    a("v_mul_f32 v%d, 0x%x, v%d" % (r + 2, LOG2E | 0x80000000, r))
for r in (4, 5):
    a("v_exp_f32 v%d, v%d" % (r + 2, r + 2))
for r in (4, 5):
    a("v_add_f32 v%d, 1.0, v%d" % (r + 2, r + 2))
for r in (4, 5):
    a("v_rcp_f32 v%d, v%d" % (r + 2, r + 2))
for r in (4, 5):
    a("v_mul_f32 v%d, v%d, v%d" % (r, r, r + 2))
a("v_cvt_pk_bf16_f32 v6, v4, v5")
a("s_cmp_lt_u32 s27, 28")
a("s_cselect_b32 s30, -1, 0")
a("v_and_b32 v6, s30, v6")
unpack(4, 5, 6)
OA = list(range(56, 64))
for i in range(2):
    a("s_waitcnt vmcnt(%d)" % (5 - i))
    for c in range(4):
        unpack(72, 73, 28 + 4 * i + c)
        if i == 0:
            a("v_mul_f32 v%d, v72, v4" % OA[2 * c])
            a("v_mul_f32 v%d, v73, v4" % OA[2 * c + 1])
        else:
            a("v_fmac_f32 v%d, v72, v5" % OA[2 * c])
            a("v_fmac_f32 v%d, v73, v5" % OA[2 * c + 1])
for i in range(4):
    a("s_waitcnt vmcnt(%d)" % (3 - i))
    for c in range(4):
        unpack(80 + 8 * i + 2 * c, 81 + 8 * i + 2 * c, 12 + 4 * i + c)
a("s_lshl_b32 s30, s26, 17")
a("s_lshl_b32 s31, s27, 7")
a("s_add_u32 s30, s30, s31")
a("s_add_u32 s30, s30, 0x%x" % WS_O)
a("v_lshlrev_b32 v36, 12, v42")
a("v_lshl_add_u32 v36, v41, 5, v36")
a("v_add_u32 v36, s30, v36")
a("v_add_u32 v37, 0x10000, v36")
a("s_lshl_b32 s30, s26, 2")
a("s_lshr_b32 s31, s27, 3")
a("s_add_u32 s30, s30, s31")
a("s_lshl_b32 s30, s30, 9")
a("s_add_u32 s30, s30, 0x%x" % WS_ML)
a("v_add_u32 v38, s30, v43")
a("s_mov_b32 s35, %d" % SPIN)
stamp()
a("s_barrier")
stamp()
a.label("L_poll2")
a("global_load_dwordx4 v[4:7], v38, s[24:25] sc1")
a("global_load_dwordx4 v[8:11], v38, s[24:25] offset:256 sc1")
a("global_load_dwordx4 v[12:15], v36, s[24:25] sc1")
a("global_load_dwordx4 v[16:19], v36, s[24:25] offset:16 sc1")
a("global_load_dwordx4 v[20:23], v37, s[24:25] sc1")
a("global_load_dwordx4 v[24:27], v37, s[24:25] offset:16 sc1")
a("s_sub_u32 s35, s35, 1")
a("s_cbranch_scc1 L_poll2_done")
a("s_waitcnt vmcnt(0)")
a("v_xor_b32 v28, s29, v5")
for r in (7, 9, 11, 13, 15, 17, 19, 21, 23, 25, 27):
    a("v_xor_b32 v29, s29, v%d" % r)
    a("v_or_b32 v28, v28, v29")
a("v_cmp_ne_u32 vcc, 0, v28")
a("s_cbranch_vccz L_poll2_done")
a("s_sleep 2")
a("s_branch L_poll2")
a.label("L_poll2_done")
a("s_waitcnt vmcnt(0)")
stamp()
a("v_max_f32 v28, v4, v8")
row_allreduce("v_max_f32", ["v28"])
a("v_sub_f32 v4, v4, v28")
a("v_sub_f32 v8, v8, v28")
a("v_exp_f32 v4, v4")
a("v_exp_f32 v8, v8")
a("v_mul_f32 v6, v6, v4")
a("v_mul_f32 v12, v12, v4")
a("v_mul_f32 v14, v14, v4")
a("v_mul_f32 v16, v16, v4")
a("v_mul_f32 v18, v18, v4")
a("v_fmac_f32 v6, v10, v8")
a("v_fmac_f32 v12, v20, v8")
a("v_fmac_f32 v14, v22, v8")
a("v_fmac_f32 v16, v24, v8")
a("v_fmac_f32 v18, v26, v8")
row_allreduce("v_add_f32", ["v6", "v12", "v14", "v16", "v18"])
a("v_rcp_f32 v6, v6")
for r in (12, 14, 16, 18):
    a("v_mul_f32 v%d, v%d, v6" % (r, r))
a("v_cvt_pk_bf16_f32 v20, v12, v14")
a("v_cvt_pk_bf16_f32 v21, v16, v18")
unpack(12, 13, 20)
unpack(14, 15, 21)
for i in range(4):
    for c in range(8):
        a("v_fmac_f32 v%d, v%d, v%d" % (OA[c], 80 + 8 * i + c, 12 + i))
transpose_reduce8(OA)
a("s_lshl_b32 s30, s2, 12")
a("s_lshl_b32 s31, s28, 10")
a("s_add_u32 s30, s30, s31")
a("s_add_u32 s30, s30, 0x%x" % WS_OUT)
a("v_lshlrev_b32 v2, 6, v42")
a("v_lshl_add_u32 v2, v41, 4, v2")
a("v_add_u32 v2, s30, v2")
a("v_mov_b32 v58, v57")
a("v_mov_b32 v57, s29")
a("v_mov_b32 v59, s29")
a("global_store_dwordx4 v2, v[56:59], s[24:25] sc1")
stamp()
stamp_flush()
a("s_endpgm")

a.label("L_att")
a.forget()
stamp_reset(1)
KR = 4
VR = 36
DR = 68
a("s_sub_u32 s36, s28, 4")
a("s_lshl_b32 s30, s26, 24")
a("s_lshl_b32 s31, s27, 15")
a("s_add_u32 s30, s30, s31")
a("s_lshl_b32 s31, s36, 13")
a("s_add_u32 s30, s30, s31")
a("s_add_u32 s30, s30, 0x%x" % (0xF00000 + 4096))
a("v_bfe_u32 v104, v1, 2, 2")
a("v_lshrrev_b32 v105, 4, v1")
a("v_and_b32 v106, 3, v1")
a("v_lshlrev_b32 v107, 8, v104")
a("v_lshl_add_u32 v107, v105, 6, v107")
a("v_lshl_add_u32 v107, v106, 4, v107")
a("v_add_u32 v2, s30, v107")
a("v_lshl_add_u32 v3, v1, 4, s30")
a("s_waitcnt lgkmcnt(0)")
a("s_load_dword s29, s[24:25], 0x%x" % WS_GEN)
a("s_barrier")
stamp()
for j in range(8):
    a("global_load_dwordx4 v[%d:%d], v2, s[6:7] offset:%d%s" % (KR + 4 * j, KR + 4 * j + 3, (j - 4) * 1024, NT))
for j in range(8):
    a("global_load_dwordx4 v[%d:%d], v3, s[8:9] offset:%d%s" % (VR + 4 * j, VR + 4 * j + 3, (j - 4) * 1024, NT))
a("s_mov_b32 s37, 0x05040100")
a("s_mov_b32 s38, 0x07060302")
a("s_mov_b32 s39, 0x%x" % LOG2E)
a("s_waitcnt lgkmcnt(0)")
a("s_add_u32 s29, s29, 1")
stamp()
a("s_barrier")
a("s_barrier")
stamp()
a("ds_read_b128 v[108:111], v107 offset:%d" % L_Q)
a("s_waitcnt lgkmcnt(0)")
for j in range(8):
    a("s_waitcnt vmcnt(%d)" % (15 - j))
    a("v_mfma_f32_16x16x32_bf16 v[%d:%d], v[%d:%d], v[108:111], 0" % (DR + 4 * j, DR + 4 * j + 3, KR + 4 * j, KR + 4 * j + 3))
stamp()
S = list(range(112, 120))
for j in range(8):
    a("v_mov_b32_dpp v%d, v%d quad_perm:[0,0,0,0] %s" % (S[j], DR + 4 * j, DPPALL))
for b in range(1, 4):
    for j in range(8):
        a("v_add_f32_dpp v%d, v%d, v%d quad_perm:[%d,%d,%d,%d] %s" % (S[j], DR + 4 * j + b, S[j], b, b, b, b, DPPALL))
T = list(range(120, 124))
for m in range(4):
    a("v_cvt_pk_bf16_f32 v%d, v%d, v%d" % (T[m], S[2 * m], S[2 * m + 1]))
for m in range(4):
    unpack(S[2 * m], S[2 * m + 1], T[m])
for j in range(8):
    a("v_mul_f32 v%d, 0x%x, v%d" % (S[j], SCALE, S[j]))
for m in range(4):
    a("v_cvt_pk_bf16_f32 v%d, v%d, v%d" % (T[m], S[2 * m], S[2 * m + 1]))
for m in range(4):
    unpack(S[2 * m], S[2 * m + 1], T[m])
a("v_max3_f32 v124, v%d, v%d, v%d" % (S[0], S[1], S[2]))
a("v_max3_f32 v125, v%d, v%d, v%d" % (S[3], S[4], S[5]))
a("v_max3_f32 v124, v124, v%d, v%d" % (S[6], S[7]))
a("v_max_f32 v124, v124, v125")
cross_rows_allreduce("v_max_f32", "v124", "v125")
a("v_mul_f32 v124, s39, v124")
for j in range(8):
    a("v_fma_f32 v%d, v%d, s39, -v124" % (S[j], S[j]))
for j in range(8):
    a("v_exp_f32 v%d, v%d" % (S[j], S[j]))
for m in range(4):
    a("v_cvt_pk_bf16_f32 v%d, v%d, v%d" % (T[m], S[2 * m], S[2 * m + 1]))
a("s_lshl_b32 s30, s36, 2")
a("v_lshl_add_u32 v126, v104, 4, s30")
a("ds_write_b32 v126, v124 offset:%d" % L_M)
for r in range(108, 112):
    a("v_mov_b32 v%d, 0x3f803f80" % r)
a("v_mfma_f32_16x16x32_bf16 v[%d:%d], v[120:123], v[108:111], 0" % (DR + 32, DR + 35))
stamp()
for m in range(4):
    a("s_waitcnt vmcnt(%d)" % (6 - 2 * m))
    for c in range(4):
        a("v_perm_b32 v%d, v%d, v%d, s37" % (KR + 4 * (2 * c) + m, VR + 4 * (2 * m + 1) + c, VR + 4 * (2 * m) + c))
        a("v_perm_b32 v%d, v%d, v%d, s38" % (KR + 4 * (2 * c + 1) + m, VR + 4 * (2 * m + 1) + c, VR + 4 * (2 * m) + c))
stamp()
for d in range(8):
    a("v_mfma_f32_16x16x32_bf16 v[%d:%d], v[120:123], v[%d:%d], 0" % (DR + 4 * d, DR + 4 * d + 3, KR + 4 * d, KR + 4 * d + 3))
a("s_lshl_b32 s31, s36, 11")
a("v_and_b32 v127, 15, v1")
a("v_lshlrev_b32 v127, 2, v127")
a("v_lshl_add_u32 v127, v105, 9, v127")
a("v_add_u32 v127, s31, v127")
a("v_lshl_add_u32 v126, v105, 4, s30")
a("ds_write_b32 v126, v%d offset:%d" % (DR + 32, L_L))
a("v_add_u32 v127, %d, v127" % L_O)
for d in range(0, 8, 2):
    a("ds_write2_b32 v127, v%d, v%d offset0:%d offset1:%d" % (DR + 4 * d, DR + 4 * d + 4, 16 * d, 16 * d + 16))
a("s_waitcnt lgkmcnt(0)")
a("s_barrier")
stamp()
a("s_lshl_b32 s30, s36, 4")
a("v_mov_b32 v2, s30")
a("ds_read_b128 v[4:7], v2 offset:%d" % L_M)
a("ds_read_b128 v[8:11], v2 offset:%d" % L_L)
a("s_lshl_b32 s31, s36, 9")
a("v_lshl_add_u32 v3, v1, 3, s31")
for w in range(4):
    a("ds_read_b64 v[%d:%d], v3 offset:%d" % (12 + 2 * w, 13 + 2 * w, L_O + 2048 * w))
a("s_lshl_b32 s30, s26, 5")
a("s_add_u32 s30, s30, s27")
a("s_lshl_b32 s30, s30, 12")
a("s_add_u32 s30, s30, 0x%x" % WS_O)
a("v_lshl_add_u32 v3, v3, 1, s30")
a("s_lshl_b32 s30, s26, 2")
a("s_add_u32 s30, s30, s36")
a("s_lshl_b32 s30, s30, 9")
a("s_lshl_b32 s31, s27, 4")
a("s_add_u32 s30, s30, s31")
a("s_add_u32 s30, s30, 0x%x" % WS_ML)
a("v_mov_b32 v2, s30")
a("v_mov_b32 v21, s29")
a("v_mov_b32 v23, s29")
a("v_mov_b32 v25, s29")
a("v_mov_b32 v27, s29")
a("s_waitcnt lgkmcnt(4)")
a("v_max3_f32 v24, v4, v5, v6")
a("v_max_f32 v24, v24, v7")
for w in range(4):
    a("v_sub_f32 v%d, v%d, v24" % (4 + w, 4 + w))
for w in range(4):
    a("v_exp_f32 v%d, v%d" % (4 + w, 4 + w))
a("v_mul_f32 v26, v4, v8")
for w in range(1, 4):
    a("v_fmac_f32 v26, v%d, v%d" % (4 + w, 8 + w))
a("s_waitcnt lgkmcnt(0)")
a("v_mul_f32 v20, v4, v12")
a("v_mul_f32 v22, v4, v13")
for w in range(1, 4):
    a("v_fmac_f32 v20, v%d, v%d" % (4 + w, 12 + 2 * w))
    a("v_fmac_f32 v22, v%d, v%d" % (4 + w, 13 + 2 * w))
a("global_store_dwordx4 v3, v[20:23], s[24:25] sc1")
a("s_mov_b64 exec, 1")
a("global_store_dwordx4 v2, v[24:27], s[24:25] sc1")
a("s_mov_b64 exec, -1")
stamp()
a("s_cmp_lg_u32 s36, 0")
a("s_cbranch_scc1 L_att_end")
a("s_lshl_b32 s30, s26, 5")
a("s_add_u32 s30, s30, s27")
a("s_lshl_b32 s31, s30, 4")
a("s_add_u32 s31, s31, 0x%x" % WS_OUT)
a("v_lshl_add_u32 v28, v1, 12, s31")
a("v_add_u32 v29, 0x40000, v28")
a("v_add_u32 v30, 0x80000, v28")
a("v_add_u32 v31, 0xc0000, v28")
a("v_lshrrev_b32 v32, 5, v1")
a("s_lshl_b32 s31, s30, 2")
a("v_lshl_add_u32 v32, v32, 1, s31")
a("global_load_ushort v33, v32, s[4:5]")
a("s_mov_b32 s35, %d" % SPIN)
a.label("L_poll3")
for i in range(4):
    a("global_load_dwordx4 v[%d:%d], v%d, s[24:25] sc1" % (4 + 4 * i, 7 + 4 * i, 28 + i))
a("s_sub_u32 s35, s35, 1")
a("s_cbranch_scc1 L_poll3_done")
a("s_waitcnt vmcnt(0)")
a("v_xor_b32 v34, s29, v5")
for r in (7, 9, 11, 13, 15, 17, 19):
    a("v_xor_b32 v35, s29, v%d" % r)
    a("v_or_b32 v34, v34, v35")
a("v_cmp_ne_u32 vcc, 0, v34")
a("s_cbranch_vccz L_poll3_done")
a("s_sleep 2")
a("s_branch L_poll3")
a.label("L_poll3_done")
a("s_waitcnt vmcnt(0)")
stamp()
a("v_add_f32 v4, v4, v8")
a("v_add_f32 v6, v6, v10")
a("v_add_f32 v12, v12, v16")
a("v_add_f32 v14, v14, v18")
a("v_add_f32 v4, v4, v12")
a("v_add_f32 v6, v6, v14")
a("v_permlane32_swap_b32 v4, v6")
a("v_add_f32 v4, v4, v6")
a("v_mov_b32 v6, v4")
a("v_permlane16_swap_b32 v4, v6")
a("v_add_f32 v4, v4, v6")
row_allreduce("v_add_f32", ["v4"])
a("v_lshlrev_b32 v33, 16, v33")
a("v_add_f32 v4, v4, v33")
a("v_cvt_pk_bf16_f32 v4, v4, v4")
a("s_mov_b32 exec_lo, 1")
a("s_mov_b32 exec_hi, 1")
a("global_store_short v32, v4, s[20:21]")
a("s_cmp_lg_u32 s2, 0")
a("s_cbranch_scc1 L_att_end")
a("v_mov_b32 v5, 0")
a("v_mov_b32 v6, s29")
a("global_store_dword v5, v6, s[24:25] offset:%d" % WS_GEN)
a.label("L_att_end")
stamp()
stamp_flush()
a.label("L_end")
a("s_endpgm")

nv = a.maxv + 1
acc = (nv + 3) // 4 * 4
out = HEADER
out += "; @launch grid=(256,1,1) block=(512,1,1) lds=%d\n" % args.lds
out += '.amdgcn_target "amdgcn-amd-amdhsa--gfx950"\n.text\n.globl %s_kernel\n.p2align 8\n.type %s_kernel,@function\n%s_kernel:\n' % (NAME, NAME, NAME)
out += a.text()
out += """.section .rodata,"a"
.p2align 6
.amdhsa_kernel %s_kernel
  .amdhsa_next_free_vgpr %d
  .amdhsa_next_free_sgpr %d
  .amdhsa_accum_offset %d
  .amdhsa_group_segment_fixed_size 0
  .amdhsa_kernarg_size 88
  .amdhsa_user_sgpr_count 2
  .amdhsa_user_sgpr_kernarg_segment_ptr 1
  .amdhsa_system_sgpr_workgroup_id_x 1
.end_amdhsa_kernel
""" % (NAME, nv, max(a.maxs + 1, 16), acc)
open(args.out, "w").write(out)
print("vgprs", nv, "sgprs", a.maxs + 1, "nops", a.nops, "lines", len(a.lines), file=sys.stderr)
```

```python
import sys, argparse
from asmlib import Asm

NAME = "parallel_sum__sliding_block_cached__dense_activation_silu__decode"
HEADER = open("cdna_kernels/%s.s.ref" % NAME).read().split("; Override launch")[0]

ap = argparse.ArgumentParser()
ap.add_argument("--stamps", action="store_true")
ap.add_argument("--out", default="cdna_kernels/%s.s" % NAME)
ap.add_argument("--lds", type=int, default=12288)
ap.add_argument("--sleep", type=int, default=1)
ap.add_argument("--kstart", type=int, default=0)
ap.add_argument("--wlate", type=int, default=0)
ap.add_argument("--throttle", type=int, default=0)
ap.add_argument("--local", type=int, default=1)
ap.add_argument("--dbg", type=int, default=0)
args = ap.parse_args()
STAMPS = args.stamps
NT = " nt"

WS_GEN = 0x0
WS_QP = 0x20000
WS_HP = 0x40000
WS_O = 0x100000
WS_OUT = 0x200000
WS_STAMP = 0x400000
L_XN = 0
L_Q = 1024
L_O = 2048
L_M = 10240
L_L = 10304
L_X = 10368
L_H = 10624
L_E = 10656
L_F = 10688
L_Y = 10752

DPPALL = "row_mask:0xf bank_mask:0xf"
LOG2E = 0x3fb8aa3b
SCALE = 0x3db504f3
SPIN = 1 << 18

a = Asm()
nstamp = [0]
def stamp():
    if STAMPS:
        k = nstamp[0]; nstamp[0] += 1
        assert k < 14
        a("s_memrealtime s[%d:%d]" % (66 + 2 * k, 67 + 2 * k))
def stamp_reset(n):
    nstamp[0] = n
def stamp_flush(n=None):
    if STAMPS:
        n = nstamp[0] if n is None else n
        a("s_waitcnt lgkmcnt(0)")
        a("s_mov_b64 exec, -1")
        a("v_mov_b32 v2, 0")
        a("s_getreg_b32 s64, hwreg(HW_REG_XCC_ID)")
        for k in range(n):
            a("v_writelane_b32 v2, s%d, %d" % (66 + 2 * k, k))
        a("v_writelane_b32 v2, s64, 14")
        a("v_writelane_b32 v2, s65, 15")
        a("s_lshl_b32 s64, s2, 3")
        a("s_add_u32 s64, s64, s28")
        a("s_lshl_b32 s64, s64, 6")
        a("s_add_u32 s64, s64, 0x%x" % WS_STAMP)
        a("v_mbcnt_lo_u32_b32 v3, -1, 0")
        a("v_lshl_add_u32 v3, v3, 2, s64")
        a("s_mov_b64 exec, 0xffff")
        a("global_store_dword v3, v2, s[24:25]")

def bf16r(dst, src):
    a("v_cvt_pk_bf16_f32 %s, %s, %s" % (dst, src, src))
    a("v_and_b32 %s, 0xffff0000, %s" % (dst, dst))

def row_allreduce(op, regs, shifts=(8, 4, 2, 1)):
    for sh in shifts:
        for r in regs:
            a("%s_dpp %s, %s, %s row_ror:%d %s" % (op, r, r, r, sh, DPPALL))

def swap_reduce(op, r, t, which):
    a("v_mov_b32 %s, %s" % (t, r))
    a("v_permlane%d_swap_b32 %s, %s" % (which, r, t))
    a("%s %s, %s, %s" % (op, r, r, t))

def cross_rows_allreduce(op, r, t):
    swap_reduce(op, r, t, 16)
    swap_reduce(op, r, t, 32)

def transpose_reduce8(acc):
    for d in range(4):
        a("v_permlane32_swap_b32 v%d, v%d" % (acc[d], acc[d + 4]))
    for d in range(4):
        a("v_add_f32 v%d, v%d, v%d" % (acc[d], acc[d], acc[d + 4]))
    for d in range(2):
        a("v_permlane16_swap_b32 v%d, v%d" % (acc[d], acc[d + 2]))
    for d in range(2):
        a("v_add_f32 v%d, v%d, v%d" % (acc[d], acc[d], acc[d + 2]))

def unpack(lo, hi, src):
    a("v_lshlrev_b32 v%d, 16, v%d" % (lo, src))
    a("v_and_b32 v%d, 0xffff0000, v%d" % (hi, src))

def perm_pair(dst, src, m):
    for c in range(4):
        a("v_perm_b32 v%d, v%d, v%d, s37" % (dst + 4 * (2 * c) + m, src + 4 * (2 * m + 1) + c, src + 4 * (2 * m) + c))
        a("v_perm_b32 v%d, v%d, v%d, s38" % (dst + 4 * (2 * c + 1) + m, src + 4 * (2 * m + 1) + c, src + 4 * (2 * m) + c))

MASKS = 40
def poll_issue(slots, masked):
    for i, (dst, addr, off) in enumerate(slots):
        if masked:
            a("s_mov_b64 exec, s[%d:%d]" % (MASKS + 2 * i, MASKS + 2 * i + 1))
        a("global_load_dwordx4 v[%d:%d], v%d, s[24:25] offset:%d sc1" % (dst, dst + 3, addr, off))
    if masked:
        a("s_mov_b64 exec, -1")

def poll_check_loop(name, slots, count=False):
    a("s_mov_b32 s35, %d" % SPIN)
    a.label("L_%s" % name)
    a("s_waitcnt vmcnt(0)")
    for i, (dst, addr, off) in enumerate(slots):
        m = MASKS + 2 * i
        a("v_cmp_ne_u32 s[%d:%d], s29, v%d" % (m, m + 1, dst + 3))
    if len(slots) == 1:
        a("s_cmp_eq_u64 s[%d:%d], 0" % (MASKS, MASKS + 1))
        a("s_cbranch_scc1 L_%s_done" % name)
    else:
        a("s_or_b64 s[56:57], s[%d:%d], s[%d:%d]" % (MASKS, MASKS + 1, MASKS + 2, MASKS + 3))
        for i in range(2, len(slots)):
            m = MASKS + 2 * i
            a("s_or_b64 s[56:57], s[56:57], s[%d:%d]" % (m, m + 1))
        a("s_cbranch_scc0 L_%s_done" % name)
    a("s_sub_u32 s35, s35, 1")
    a("s_cbranch_scc1 L_%s_done" % name)
    if args.sleep:
        a("s_sleep %d" % args.sleep)
    poll_issue(slots, True)
    a("s_branch L_%s" % name)
    a.label("L_%s_done" % name)
    if count and STAMPS:
        a("s_sub_u32 s65, %d, s35" % SPIN)

a("s_cmp_ge_u32 s2, 256")
a("s_cbranch_scc1 L_end")
if STAMPS:
    for k in range(1, 14):
        a("s_mov_b32 s%d, 0" % (66 + 2 * k))
    a("s_mov_b32 s65, 0")
stamp()
if args.dbg:
    a("s_memrealtime s[60:61]")
a("s_load_dwordx16 s[4:19], s[0:1], 0")
a("s_load_dwordx4 s[20:23], s[0:1], 64")
a("s_load_dwordx2 s[24:25], s[0:1], 80")
a("v_lshrrev_b32 v2, 6, v0")
a("v_and_b32 v1, 63, v0")
a("v_readfirstlane_b32 s28, v2")
a("s_and_b32 s26, s2, 7")
a("s_lshr_b32 s27, s2, 3")
a("s_mov_b32 s37, 0x05040100")
a("s_mov_b32 s38, 0x07060302")
a("s_getreg_b32 s34, hwreg(HW_REG_XCC_ID)")
a("v_lshrrev_b32 v125, 4, v1")
a("v_and_b32 v126, 7, v1")
a("v_lshrrev_b32 v124, 3, v1")
a("s_cmp_lt_u32 s28, 4")
a("s_cbranch_scc1 L_w")

KR = 4
VR = 36
BR = 68
QG = 100
a("s_sub_u32 s36, s28, 4")
a("s_lshl_b32 s30, s26, 24")
a("s_lshl_b32 s31, s27, 15")
a("s_add_u32 s30, s30, s31")
a("s_lshl_b32 s31, s36, 13")
a("s_add_u32 s30, s30, s31")
a("s_add_u32 s30, s30, 0x%x" % (0xF00000 + 4096))
a("v_bfe_u32 v123, v1, 2, 2")
a("v_and_b32 v122, 3, v1")
a("v_lshlrev_b32 v127, 8, v123")
a("v_lshl_add_u32 v127, v125, 6, v127")
a("v_lshl_add_u32 v127, v122, 4, v127")
a("v_add_u32 v2, s30, v127")
a("v_lshl_add_u32 v3, v1, 4, s30")
a("s_lshl_b32 s30, s26, 14")
a("s_lshl_b32 s31, s36, 12")
a("s_add_u32 s30, s30, s31")
a("s_add_u32 s30, s30, 0x%x" % WS_QP)
a("v_and_b32 v120, 31, v1")
a("v_lshrrev_b32 v121, 5, v1")
a("v_lshlrev_b32 v120, 4, v120")
a("v_lshl_add_u32 v120, v121, 11, v120")
a("v_add_u32 v120, s30, v120")
a("s_waitcnt lgkmcnt(0)")
a("s_load_dword s29, s[24:25], 0x%x" % WS_GEN)
a("s_barrier")
stamp()
for j in range(8):
    a("global_load_dwordx4 v[%d:%d], v2, s[6:7] offset:%d%s" % (KR + 4 * j, KR + 4 * j + 3, (j - 4) * 1024, NT))
for j in range(8):
    if args.throttle:
        a("s_waitcnt vmcnt(%d)" % (args.throttle - 1))
    a("global_load_dwordx4 v[%d:%d], v3, s[8:9] offset:%d%s" % (VR + 4 * j, VR + 4 * j + 3, (j - 4) * 1024, NT))
stamp()
a("s_mov_b32 s39, 0x%x" % LOG2E)
a("v_bfe_u32 v118, v1, 3, 2")
a("v_lshlrev_b32 v119, 4, v126")
a("v_lshl_add_u32 v119, v118, 2, v119")
a("v_lshl_add_u32 v119, v121, 7, v119")
a("s_lshl_b32 s30, s36, 8")
a("v_add_u32 v119, s30, v119")
a("s_waitcnt lgkmcnt(0)")
a("s_add_u32 s29, s29, 1")
a("s_barrier")
qslots = [(QG + 4 * rb, 120, 512 * rb) for rb in range(4)]
poll_issue(qslots, False)
stamp()
if not args.wlate:
    a("s_barrier")
for m in range(4):
    a("s_waitcnt vmcnt(%d)" % (10 - 2 * m))
    perm_pair(BR, VR, m)
stamp()
poll_check_loop("pollq", qslots, True)
stamp()
a("v_add_f32 v%d, v%d, v%d" % (QG, QG, QG + 4))
a("v_add_f32 v%d, v%d, v%d" % (QG + 1, QG + 1, QG + 5))
a("v_add_f32 v%d, v%d, v%d" % (QG + 8, QG + 8, QG + 12))
a("v_add_f32 v%d, v%d, v%d" % (QG + 9, QG + 9, QG + 13))
a("v_add_f32 v%d, v%d, v%d" % (QG, QG, QG + 8))
a("v_add_f32 v%d, v%d, v%d" % (QG + 1, QG + 1, QG + 9))
a("v_cvt_pk_bf16_f32 v%d, v%d, v%d" % (QG, QG, QG + 1))
a("ds_write_b32 v119, v%d offset:%d" % (QG, L_Q))
a("v_xor_b32 v%d, s34, v%d" % (QG + 2, QG + 2))
a("v_xor_b32 v%d, s34, v%d" % (QG + 6, QG + 6))
a("v_xor_b32 v%d, s34, v%d" % (QG + 10, QG + 10))
a("v_xor_b32 v%d, s34, v%d" % (QG + 14, QG + 14))
a("v_or3_b32 v%d, v%d, v%d, v%d" % (QG + 2, QG + 2, QG + 6, QG + 10))
a("v_or_b32 v%d, v%d, v%d" % (QG + 2, QG + 2, QG + 14))
a("v_cmp_ne_u32 vcc, 0, v%d" % (QG + 2))
a("s_or_b32 s31, vcc_lo, vcc_hi")
a("s_lshl_b32 s30, s36, 2")
a("v_mov_b32 v2, s30")
a("v_mov_b32 v3, s31")
a("ds_write_b32 v2, v3 offset:%d" % L_F)
a("s_waitcnt lgkmcnt(0)")
a("s_barrier")
a("ds_read_b128 v[100:103], v127 offset:%d" % L_Q)
a("s_waitcnt lgkmcnt(0)")
stamp()
DR = VR
for j in range(8):
    a("v_mfma_f32_16x16x32_bf16 v[%d:%d], v[%d:%d], v[100:103], 0" % (DR + 4 * j, DR + 4 * j + 3, KR + 4 * j, KR + 4 * j + 3))
S = list(range(104, 112))
for j in range(8):
    a("v_mov_b32_dpp v%d, v%d quad_perm:[0,0,0,0] %s" % (S[j], DR + 4 * j, DPPALL))
for b in range(1, 4):
    for j in range(8):
        a("v_add_f32_dpp v%d, v%d, v%d quad_perm:[%d,%d,%d,%d] %s" % (S[j], DR + 4 * j + b, S[j], b, b, b, b, DPPALL))
T = list(range(112, 116))
for m in range(4):
    a("v_cvt_pk_bf16_f32 v%d, v%d, v%d" % (T[m], S[2 * m], S[2 * m + 1]))
for m in range(4):
    unpack(S[2 * m], S[2 * m + 1], T[m])
for j in range(8):
    a("v_mul_f32 v%d, 0x%x, v%d" % (S[j], SCALE, S[j]))
for m in range(4):
    a("v_cvt_pk_bf16_f32 v%d, v%d, v%d" % (T[m], S[2 * m], S[2 * m + 1]))
for m in range(4):
    unpack(S[2 * m], S[2 * m + 1], T[m])
a("v_max3_f32 v116, v%d, v%d, v%d" % (S[0], S[1], S[2]))
a("v_max3_f32 v117, v%d, v%d, v%d" % (S[3], S[4], S[5]))
a("v_max3_f32 v116, v116, v%d, v%d" % (S[6], S[7]))
a("v_max_f32 v116, v116, v117")
cross_rows_allreduce("v_max_f32", "v116", "v117")
a("v_mul_f32 v116, s39, v116")
for j in range(8):
    a("v_fma_f32 v%d, v%d, s39, -v116" % (S[j], S[j]))
for j in range(8):
    a("v_exp_f32 v%d, v%d" % (S[j], S[j]))
for r in range(VR, VR + 4):
    a("v_mov_b32 v%d, 0x3f803f80" % r)
for m in range(4):
    a("v_cvt_pk_bf16_f32 v%d, v%d, v%d" % (T[m], S[2 * m], S[2 * m + 1]))
a("v_lshl_add_u32 v118, v123, 4, s30")
a("v_mfma_f32_16x16x32_bf16 v[100:103], v[112:115], v[%d:%d], 0" % (VR, VR + 3))
for d in range(8):
    a("v_mfma_f32_16x16x32_bf16 v[%d:%d], v[112:115], v[%d:%d], 0" % (KR + 4 * d, KR + 4 * d + 3, BR + 4 * d, BR + 4 * d + 3))
a("ds_write_b32 v118, v116 offset:%d" % L_M)
a("s_lshl_b32 s31, s36, 11")
a("s_add_u32 s31, s31, %d" % L_O)
a("v_and_b32 v119, 15, v1")
a("v_lshlrev_b32 v119, 2, v119")
a("v_lshl_add_u32 v119, v125, 9, v119")
a("v_add_u32 v119, s31, v119")
a("v_lshl_add_u32 v118, v125, 4, s30")
a("ds_write_b32 v118, v100 offset:%d" % L_L)
for d in range(0, 8, 2):
    a("ds_write2_b32 v119, v%d, v%d offset0:%d offset1:%d" % (KR + 4 * d, KR + 4 * d + 4, 16 * d, 16 * d + 16))
a("s_lshl_b32 s30, s36, 4")
a("v_mov_b32 v2, s30")
a("s_lshl_b32 s31, s36, 9")
a("v_lshl_add_u32 v3, v1, 3, s31")
a("v_mov_b32 v64, 0")
a("ds_read_b128 v[60:63], v64 offset:%d" % L_F)
stamp()
a("s_waitcnt lgkmcnt(0)")
a("s_barrier")
a("ds_read_b128 v[40:43], v2 offset:%d" % L_M)
a("ds_read_b128 v[44:47], v2 offset:%d" % L_L)
for w in range(4):
    a("ds_read_b64 v[%d:%d], v3 offset:%d" % (48 + 2 * w, 49 + 2 * w, L_O + 2048 * w))
a("s_lshl_b32 s30, s26, 5")
a("s_add_u32 s30, s30, s27")
a("s_lshl_b32 s30, s30, 12")
a("s_add_u32 s30, s30, 0x%x" % WS_O)
a("v_lshl_add_u32 v3, v3, 1, s30")
a("v_or3_b32 v60, v60, v61, v62")
a("v_or_b32 v60, v60, v63")
a("v_mov_b32 v59, s29")
a("v_readfirstlane_b32 s33, v60")
a("s_waitcnt lgkmcnt(4)")
a("v_max3_f32 v64, v40, v41, v42")
a("v_max_f32 v64, v64, v43")
for w in range(4):
    a("v_sub_f32 v%d, v%d, v64" % (40 + w, 40 + w))
for w in range(4):
    a("v_exp_f32 v%d, v%d" % (40 + w, 40 + w))
a("v_mul_f32 v65, v40, v44")
for w in range(1, 4):
    a("v_fmac_f32 v65, v%d, v%d" % (40 + w, 44 + w))
a("s_waitcnt lgkmcnt(0)")
a("v_mul_f32 v56, v40, v48")
a("v_mul_f32 v57, v40, v49")
a("v_rcp_f32 v66, v65")
a("v_log_f32 v58, v65")
for w in range(1, 4):
    a("v_fmac_f32 v56, v%d, v%d" % (40 + w, 48 + 2 * w))
    a("v_fmac_f32 v57, v%d, v%d" % (40 + w, 49 + 2 * w))
a("v_add_f32 v58, v58, v64")
a("v_mul_f32 v56, v56, v66")
a("v_mul_f32 v57, v57, v66")
if args.local:
    a("s_cmp_lg_u32 s33, 0")
    a("s_cbranch_scc1 L_o_remote")
    a("global_store_dwordx4 v3, v[56:59], s[24:25]")
    a("s_branch L_o_done")
    a.label("L_o_remote")
a("global_store_dwordx4 v3, v[56:59], s[24:25] sc1")
a.label("L_o_done")
stamp()
a("s_barrier")
stamp()
a("s_branch L_ho3")

a.label("L_w")
a.forget()
stamp_reset(1)
WR = 4
a("s_cmp_ge_u32 s28, 2")
a("s_cbranch_scc1 L_w_idle")
a("v_lshlrev_b32 v2, 4, v1")
a("s_cmp_lg_u32 s28, 0")
a("s_cbranch_scc1 L_f_load")
a("s_and_b32 s30, s27, 3")
a("s_lshl_b32 s30, s30, 20")
a("s_lshl_b32 s31, s26, 10")
a("s_add_u32 s30, s30, s31")
a("s_lshr_b32 s31, s27, 2")
a("s_lshl_b32 s31, s31, 7")
a("s_add_u32 s30, s30, s31")
a("v_lshlrev_b32 v3, 16, v124")
a("v_lshl_add_u32 v3, v126, 4, v3")
a("v_add_u32 v3, s30, v3")
a("s_movk_i32 s32, 0x2000")
a("s_waitcnt lgkmcnt(0)")
a("global_load_dwordx4 v[100:103], v2, s[4:5]")
a("s_load_dword s29, s[24:25], 0x%x" % WS_GEN)
for G in range(2):
    for jj in range(8):
        j = 8 * G + jj
        a("global_load_dwordx4 v[%d:%d], v3, s[10:11]%s" % (WR + 4 * j, WR + 4 * j + 3, NT))
        if j < 15:
            if jj == 7:
                a("v_add_u32 v3, 0x%x, v3" % (57 * 8192))
            else:
                a("v_add_u32 v3, s32, v3")
if args.kstart:
    a("s_waitcnt vmcnt(%d)" % (17 - args.kstart))
a("s_barrier")
stamp()
a("s_waitcnt vmcnt(16)")
a("s_branch L_ln")
a.label("L_f_load")
a("s_min_u32 s31, s27, 27")
a("s_lshl_b32 s31, s31, 7")
a("s_mul_i32 s30, s26, %d" % (64 * 3584))
a("s_add_u32 s30, s30, s31")
a("v_mul_u32_u24 v3, %d, v124" % (8 * 3584))
a("v_lshl_add_u32 v3, v126, 4, v3")
a("v_add_u32 v3, s30, v3")
a("s_movk_i32 s32, 3584")
a("s_waitcnt lgkmcnt(0)")
a("global_load_dwordx4 v[100:103], v2, s[4:5]")
a("s_load_dword s29, s[24:25], 0x%x" % WS_GEN)
for jj in range(8):
    a("global_load_dwordx4 v[%d:%d], v3, s[16:17]%s" % (WR + 32 + 4 * jj, WR + 32 + 4 * jj + 3, NT))
    if jj < 7:
        a("v_add_u32 v3, s32, v3")
a("s_barrier")
stamp_reset(1)
stamp()
a("s_waitcnt vmcnt(8)")
a.label("L_ln")
XV = 104
for i in range(4):
    unpack(XV + 2 * i, XV + 1 + 2 * i, 100 + i)
a("v_add_f32 v120, v104, v105")
a("v_add_f32 v121, v106, v107")
a("v_add_f32 v122, v108, v109")
a("v_add_f32 v123, v110, v111")
a("v_add_f32 v120, v120, v121")
a("v_add_f32 v122, v122, v123")
a("v_add_f32 v120, v120, v122")
row_allreduce("v_add_f32", ["v120"])
cross_rows_allreduce("v_add_f32", "v120", "v121")
a("v_mul_f32 v120, 0x3b000000, v120")
for i in range(8):
    a("v_sub_f32 v%d, v%d, v120" % (112 + i, XV + i))
a("v_mul_f32 v121, v112, v112")
a("v_mul_f32 v122, v113, v113")
for i in range(2, 8, 2):
    a("v_fmac_f32 v121, v%d, v%d" % (112 + i, 112 + i))
    a("v_fmac_f32 v122, v%d, v%d" % (113 + i, 113 + i))
a("v_add_f32 v121, v121, v122")
bf16r("v120", "v120")
row_allreduce("v_add_f32", ["v121"])
cross_rows_allreduce("v_add_f32", "v121", "v122")
for i in range(8):
    a("v_sub_f32 v%d, v%d, v120" % (XV + i, XV + i))
a("v_mul_f32 v121, 0x3b000000, v121")
bf16r("v121", "v121")
a("v_add_f32 v121, 0x3727c5ac, v121")
bf16r("v121", "v121")
a("v_sqrt_f32 v121, v121")
for i in range(4):
    a("v_cvt_pk_bf16_f32 v%d, v%d, v%d" % (100 + i, XV + 2 * i, XV + 2 * i + 1))
bf16r("v121", "v121")
a("v_rcp_f32 v121, v121")
for i in range(4):
    unpack(XV + 2 * i, XV + 1 + 2 * i, 100 + i)
for i in range(8):
    a("v_mul_f32 v%d, v%d, v121" % (XV + i, XV + i))
for i in range(4):
    a("v_cvt_pk_bf16_f32 v%d, v%d, v%d" % (100 + i, XV + 2 * i, XV + 2 * i + 1))
a("ds_write_b128 v2, v[100:103] offset:%d" % L_XN)
a("v_and_b32 v127, 1, v1")
a("v_lshl_add_u32 v127, v125, 1, v127")
a("v_lshlrev_b32 v127, 4, v127")
a("s_waitcnt lgkmcnt(0)")
a("s_add_u32 s29, s29, 1")
a("v_mov_b32 v122, s34")
a("v_mov_b32 v123, s29")
stamp()
a("s_cmp_lg_u32 s28, 0")
a("s_cbranch_scc1 L_f")
a("s_and_b32 s30, s27, 3")
a("s_lshl_b32 s30, s30, 8")
a("v_add_u32 v127, s30, v127")
a("ds_read_b128 v[104:107], v127 offset:%d" % L_XN)
a("ds_read_b128 v[108:111], v127 offset:%d" % (L_XN + 128))
a("s_lshl_b32 s30, s26, 14")
a("s_lshl_b32 s31, s27, 9")
a("s_add_u32 s30, s30, s31")
a("s_add_u32 s30, s30, 0x%x" % WS_QP)
a("v_lshlrev_b32 v3, 4, v126")
a("v_lshl_add_u32 v3, v125, 7, v3")
a("v_add_u32 v3, s30, v3")
for m in range(4):
    a("s_waitcnt vmcnt(%d)" % (14 - 2 * m))
    perm_pair(BR, WR, m)
a("s_waitcnt lgkmcnt(0)")
for d in range(8):
    a("v_mfma_f32_16x16x32_bf16 v[%d:%d], v[104:107], v[%d:%d], 0" % (WR + 4 * d, WR + 4 * d + 3, BR + 4 * d, BR + 4 * d + 3))
a("s_branch L_grp1")
a.label("L_f")
a("s_lshl_b32 s30, s26, 7")
a("v_add_u32 v127, s30, v127")
a("ds_read_b128 v[108:111], v127 offset:%d" % L_XN)
a("s_lshl_b32 s30, s27, 12")
a("s_lshl_b32 s31, s26, 6")
a("s_add_u32 s30, s30, s31")
a("s_add_u32 s30, s30, 0x%x" % WS_HP)
a("v_bfe_u32 v2, v1, 2, 1")
a("v_lshl_add_u32 v2, v125, 1, v2")
a("v_and_b32 v3, 3, v1")
a("v_lshlrev_b32 v3, 4, v3")
a("v_lshl_add_u32 v3, v2, 9, v3")
a("v_add_u32 v3, s30, v3")
for d in range(8):
    a("v_mov_b32 v%d, 0" % (WR + 4 * d))
    a("v_mov_b32 v%d, 0" % (WR + 4 * d + 1))
a("s_waitcnt lgkmcnt(0)")
a.label("L_grp1")
for m in range(4):
    a("s_waitcnt vmcnt(%d)" % (6 - 2 * m))
    perm_pair(BR, WR + 32, m)
for d in range(8):
    a("v_mfma_f32_16x16x32_bf16 v[%d:%d], v[108:111], v[%d:%d], v[%d:%d]" % (WR + 4 * d, WR + 4 * d + 3, BR + 4 * d, BR + 4 * d + 3, WR + 4 * d, WR + 4 * d + 3))
for u in range(4):
    for e in range(2):
        d = 2 * u + e
        a("v_add_f32_dpp v%d, v%d, v%d row_ror:8 row_mask:0x%x bank_mask:0xf" % (120 + e, WR + 4 * d + 1, WR + 4 * d, 1 << u))
a("s_mov_b32 exec_lo, 0x00ff00ff")
a("s_mov_b32 exec_hi, 0x00ff00ff")
a("global_store_dwordx4 v3, v[120:123], s[24:25] sc1")
a("s_mov_b64 exec, -1")
stamp()
a("s_branch L_w_common")
a.label("L_w_idle")
a.forget()
a("s_waitcnt lgkmcnt(0)")
a("s_load_dword s29, s[24:25], 0x%x" % WS_GEN)
a("s_barrier")
a("s_waitcnt lgkmcnt(0)")
a("s_add_u32 s29, s29, 1")
a.label("L_w_common")
a.forget()
stamp_reset(4)
a("s_lshl_b32 s30, s26, 9")
a("s_lshr_b32 s31, s27, 3")
a("s_lshl_b32 s31, s31, 7")
a("s_add_u32 s30, s30, s31")
a("s_and_b32 s31, s27, 7")
a("s_add_u32 s30, s30, s31")
a("s_lshl_b32 s30, s30, 10")
a("s_lshl_b32 s31, s28, 8")
a("s_add_u32 s30, s30, s31")
a("v_and_b32 v116, 15, v1")
a("v_lshlrev_b32 v116, 4, v116")
a("v_lshl_add_u32 v117, v125, 15, v116")
a("v_add_u32 v117, s30, v117")
a("s_min_u32 s32, s27, 27")
a("s_lshl_b32 s30, s32, 6")
a("s_and_b32 s33, s26, 1")
a("s_lshl_b32 s33, s33, 5")
a("s_add_u32 s30, s30, s33")
a("s_and_b32 s33, s26, 6")
a("s_add_u32 s30, s30, s33")
a("s_lshl_b32 s30, s30, 10")
a("s_add_u32 s30, s30, s31")
a("v_lshl_add_u32 v118, v125, 13, v116")
a("v_add_u32 v118, s30, v118")
a("s_movk_i32 s33, 0x2000")
a("s_lshl_b32 s30, s32, 12")
a("s_lshl_b32 s31, s26, 9")
a("s_add_u32 s30, s30, s31")
a("s_add_u32 s30, s30, 0x%x" % WS_HP)
a("v_and_b32 v119, 31, v1")
a("v_lshl_add_u32 v119, v119, 4, s30")
a("s_lshl_b32 s30, s26, 17")
a("s_lshl_b32 s31, s27, 7")
a("s_add_u32 s30, s30, s31")
a("s_lshl_b32 s31, s28, 15")
a("s_add_u32 s30, s30, s31")
a("s_add_u32 s30, s30, 0x%x" % WS_O)
a("v_lshlrev_b32 v115, 12, v124")
a("v_lshl_add_u32 v115, v126, 4, v115")
a("v_add_u32 v115, s30, v115")
a("s_barrier")
a("s_barrier")
stamp()
hslots = [(4, 119, 0)]
a("s_cmp_lg_u32 s28, 2")
a("s_cbranch_scc1 L_noh1")
poll_issue(hslots, False)
a.label("L_noh1")
OR_ = 36
a("global_load_dwordx4 v[%d:%d], v118, s[18:19]%s" % (OR_, OR_ + 3, NT))
a("global_load_dwordx4 v[%d:%d], v118, s[18:19] offset:1024%s" % (OR_ + 4, OR_ + 7, NT))
for i in range(4):
    a("global_load_dwordx4 v[%d:%d], v117, s[12:13]%s" % (OR_ + 8 + 4 * i, OR_ + 8 + 4 * i + 3, NT))
    if i < 3:
        a("v_add_u32 v117, s33, v117")
if not args.wlate:
    a("s_barrier")
stamp()
a("s_cmp_lg_u32 s28, 2")
a("s_cbranch_scc1 L_noh2")
a("s_waitcnt vmcnt(6)")
a("v_cmp_ne_u32 vcc, s29, v7")
a("s_cbranch_vccz L_pollh_done")
poll_check_loop("pollh", hslots)
row_allreduce("v_add_f32", ["v4", "v5"], (8, 4))
swap_reduce("v_add_f32", "v4", "v8", 16)
swap_reduce("v_add_f32", "v5", "v9", 16)
a("v_cvt_pk_bf16_f32 v6, v4, v5")
unpack(4, 5, 6)
for r in (4, 5):
    a("v_mul_f32 v%d, 0x%x, v%d" % (r + 2, LOG2E | 0x80000000, r))
for r in (4, 5):
    a("v_exp_f32 v%d, v%d" % (r + 2, r + 2))
for r in (4, 5):
    a("v_add_f32 v%d, 1.0, v%d" % (r + 2, r + 2))
for r in (4, 5):
    a("v_rcp_f32 v%d, v%d" % (r + 2, r + 2))
for r in (4, 5):
    a("v_mul_f32 v%d, v%d, v%d" % (r, r, r + 2))
a("v_cvt_pk_bf16_f32 v6, v4, v5")
a("s_cmp_lt_u32 s27, 28")
a("s_cselect_b32 s30, -1, 0")
a("v_and_b32 v6, s30, v6")
unpack(12, 13, 6)
a("v_and_b32 v2, 3, v1")
a("v_lshlrev_b32 v2, 3, v2")
a("ds_write_b64 v2, v[12:13] offset:%d" % L_H)
a("s_waitcnt lgkmcnt(0)")
a.label("L_noh2")
a.forget()
stamp()
a("v_lshlrev_b32 v2, 3, v125")
a("s_barrier")
stamp()
o2slots = [(4, 115, 0)]
poll_issue(o2slots, False)
a("ds_read_b64 v[20:21], v2 offset:%d" % L_H)
UR = 60
OA = list(range(24, 32))
a("s_waitcnt vmcnt(5)")
for i in range(2):
    for c in range(4):
        unpack(UR + 8 * i + 2 * c, UR + 1 + 8 * i + 2 * c, OR_ + 4 * i + c)
a("s_waitcnt lgkmcnt(0)")
for c in range(8):
    a("v_mul_f32 v%d, v%d, v20" % (OA[c], UR + c))
for c in range(8):
    a("v_fmac_f32 v%d, v%d, v21" % (OA[c], UR + 8 + c))
a("s_waitcnt vmcnt(1)")
for i in range(2, 6):
    for c in range(4):
        unpack(UR + 8 * i + 2 * c, UR + 1 + 8 * i + 2 * c, OR_ + 4 * i + c)
a("v_lshrrev_b32 v2, 5, v1")
a("v_lshl_add_u32 v2, v126, 1, v2")
a("s_lshl_b32 s30, s28, 2")
a("v_lshl_add_u32 v2, v2, 4, s30")
a("v_mov_b32 v32, s30")
a("v_lshlrev_b32 v3, 6, v125")
a("v_mov_b32 v33, 0")
stamp()
poll_check_loop("poll2", o2slots, True)
stamp()
a("v_max_f32_dpp v8, v6, v6 row_ror:8 %s" % DPPALL)
cross_rows_allreduce("v_max_f32", "v8", "v9")
a("v_sub_f32 v6, v6, v8")
a("v_exp_f32 v6, v6")
a("v_mul_f32 v4, v4, v6")
a("v_mul_f32 v5, v5, v6")
a("v_add_f32_dpp v9, v6, v6 row_ror:8 %s" % DPPALL)
a("v_permlane32_swap_b32 v4, v5")
a("v_mov_b32 v10, v9")
a("v_add_f32 v4, v4, v5")
a("v_permlane16_swap_b32 v9, v10")
a("v_mov_b32 v5, v4")
a("v_add_f32 v9, v9, v10")
a("v_permlane16_swap_b32 v4, v5")
a("v_mov_b32 v10, v9")
a("v_add_f32 v4, v4, v5")
a("v_permlane32_swap_b32 v9, v10")
a("v_add_f32_dpp v4, v4, v4 row_ror:8 %s" % DPPALL)
a("v_add_f32 v9, v9, v10")
a("ds_write_b32 v2, v4 offset:%d" % L_X)
a("ds_write2_b32 v32, v8, v9 offset0:%d offset1:%d" % (0, 4)) if False else None
a("v_add_u32 v32, %d, v32" % L_E)
a("ds_write2_b32 v32, v8, v9 offset0:0 offset1:4")
a("s_waitcnt lgkmcnt(0)")
a("s_barrier")
a("ds_read_b128 v[108:111], v33 offset:%d" % L_E)
a("ds_read_b128 v[112:115], v33 offset:%d" % (L_E + 16))
for i in range(4):
    a("ds_read_b128 v[%d:%d], v3 offset:%d" % (4 + 4 * i, 7 + 4 * i, L_X + 16 * i))
a("s_lshl_b32 s30, s2, 12")
a("s_lshl_b32 s31, s28, 10")
a("s_add_u32 s30, s30, s31")
a("s_add_u32 s30, s30, 0x%x" % WS_OUT)
a("v_lshl_add_u32 v2, v1, 4, s30")
a("s_waitcnt lgkmcnt(4)")
a("v_max3_f32 v20, v108, v109, v110")
a("v_max_f32 v20, v20, v111")
for w in range(4):
    a("v_sub_f32 v%d, v%d, v20" % (108 + w, 108 + w))
for w in range(4):
    a("v_exp_f32 v%d, v%d" % (108 + w, 108 + w))
a("v_mul_f32 v21, v108, v112")
for w in range(1, 4):
    a("v_fmac_f32 v21, v%d, v%d" % (108 + w, 112 + w))
a("s_waitcnt lgkmcnt(0)")
a("v_rcp_f32 v21, v21")
for i in range(4):
    a("v_mul_f32 v%d, v%d, v108" % (4 + 4 * i, 4 + 4 * i))
for w in range(1, 4):
    for i in range(4):
        a("v_fmac_f32 v%d, v%d, v%d" % (4 + 4 * i, 4 + 4 * i + w, 108 + w))
for i in range(4):
    a("v_mul_f32 v%d, v%d, v21" % (4 + 4 * i, 4 + 4 * i))
a("v_cvt_pk_bf16_f32 v20, v4, v8")
a("v_cvt_pk_bf16_f32 v21, v12, v16")
unpack(4, 5, 20)
unpack(6, 7, 21)
for i in range(4):
    for c in range(8):
        a("v_fmac_f32 v%d, v%d, v%d" % (OA[c], UR + 16 + 8 * i + c, 4 + i))
transpose_reduce8(OA)
a("v_mov_b32 v27, s29")
a("global_store_dwordx4 v2, v[24:27], s[24:25] sc1")
stamp()

a.label("L_ho3")
a.forget()
a("s_nop 1")
stamp_reset(11)
a("s_cmp_ge_u32 s2, 32")
a("s_cbranch_scc1 L_fin")
a("s_lshl_b32 s30, s28, 17")
a("s_lshl_b32 s31, s2, 7")
a("s_add_u32 s30, s30, s31")
a("s_add_u32 s30, s30, 0x%x" % WS_OUT)
a("v_lshlrev_b32 v28, 12, v124")
a("v_lshl_add_u32 v28, v126, 4, v28")
a("v_add_u32 v28, s30, v28")
a("v_add_u32 v29, 0x8000, v28")
a("v_add_u32 v30, 0x10000, v28")
a("v_add_u32 v31, 0x18000, v28")
a("s_lshr_b32 s30, s2, 3")
a("s_lshl_b32 s30, s30, 8")
a("s_and_b32 s31, s2, 1")
a("s_lshl_b32 s31, s31, 7")
a("s_add_u32 s30, s30, s31")
a("s_and_b32 s31, s2, 6")
a("s_lshl_b32 s31, s31, 1")
a("s_add_u32 s30, s30, s31")
a("v_lshl_add_u32 v32, v126, 4, s30")
a("global_load_dword v33, v32, s[4:5]")
o3slots = [(4 + 4 * i, 28 + i, 0) for i in range(4)]
poll_issue(o3slots, False)
a("v_lshrrev_b32 v2, 5, v1")
a("v_lshl_add_u32 v2, v126, 1, v2")
a("s_lshl_b32 s30, s28, 2")
a("v_lshl_add_u32 v2, v2, 5, s30")
a("v_lshlrev_b32 v3, 6, v126")
poll_check_loop("poll3", o3slots)
stamp()
a("v_add_f32 v4, v4, v8")
a("v_add_f32 v5, v5, v9")
a("v_add_f32 v12, v12, v16")
a("v_add_f32 v13, v13, v17")
a("v_add_f32 v4, v4, v12")
a("v_add_f32 v5, v5, v13")
a("v_permlane32_swap_b32 v4, v5")
a("v_add_f32 v4, v4, v5")
swap_reduce("v_add_f32", "v4", "v5", 16)
a("v_add_f32_dpp v4, v4, v4 row_ror:8 %s" % DPPALL)
a("ds_write_b32 v2, v4 offset:%d" % L_Y)
a("s_waitcnt lgkmcnt(0)")
a("s_barrier")
a("s_cmp_lg_u32 s28, 0")
a("s_cbranch_scc1 L_fin")
for i in range(4):
    a("ds_read_b128 v[%d:%d], v3 offset:%d" % (4 + 4 * i, 7 + 4 * i, L_Y + 16 * i))
unpack(34, 35, 33)
a("s_waitcnt lgkmcnt(0)")
for i in range(4):
    a("v_add_f32 v%d, v%d, v%d" % (4 + 4 * i, 4 + 4 * i, 5 + 4 * i))
    a("v_add_f32 v%d, v%d, v%d" % (6 + 4 * i, 6 + 4 * i, 7 + 4 * i))
for i in range(4):
    a("v_add_f32 v%d, v%d, v%d" % (4 + 4 * i, 4 + 4 * i, 6 + 4 * i))
a("v_add_f32 v4, v4, v8")
a("v_add_f32 v12, v12, v16")
a("v_add_f32 v4, v4, v34")
a("v_add_f32 v12, v12, v35")
a("v_cvt_pk_bf16_f32 v4, v4, v12")
a("s_mov_b64 exec, 0xff")
a("global_store_dword v32, v4, s[20:21]")
if args.dbg:
    a("s_memrealtime s[62:63]")
    a("s_waitcnt lgkmcnt(0)")
    a("s_not_b32 s60, s60")
    a("s_mov_b64 exec, 1")
    a("v_mov_b32 v5, 0")
    a("v_mov_b32 v6, s60")
    a("v_mov_b32 v7, s62")
    a("global_atomic_umax v5, v6, s[22:23]")
    a("global_atomic_umax v5, v7, s[22:23] offset:4")
a("s_cmp_lg_u32 s2, 0")
a("s_cbranch_scc1 L_fin")
a("v_mov_b32 v5, 0")
a("v_mov_b32 v6, s29")
a("global_store_dword v5, v6, s[24:25] offset:%d" % WS_GEN)
a.label("L_fin")
stamp_reset(12)
stamp()
stamp_flush(13)
a.label("L_end")
a("s_endpgm")

nv = a.maxv + 1
acc = (nv + 3) // 4 * 4
out = HEADER
out += "; @launch grid=(256,1,1) block=(512,1,1) lds=%d\n" % args.lds
out += '.amdgcn_target "amdgcn-amd-amdhsa--gfx950"\n.text\n.globl %s_kernel\n.p2align 8\n.type %s_kernel,@function\n%s_kernel:\n' % (NAME, NAME, NAME)
out += a.text()
out += """.section .rodata,"a"
.p2align 6
.amdhsa_kernel %s_kernel
  .amdhsa_next_free_vgpr %d
  .amdhsa_next_free_sgpr %d
  .amdhsa_accum_offset %d
  .amdhsa_group_segment_fixed_size 0
  .amdhsa_kernarg_size 88
  .amdhsa_user_sgpr_count 2
  .amdhsa_user_sgpr_kernarg_segment_ptr 1
  .amdhsa_system_sgpr_workgroup_id_x 1
.end_amdhsa_kernel
""" % (NAME, nv, max(a.maxs + 1, 16), acc)
open(args.out, "w").write(out)
print("vgprs", nv, "sgprs", a.maxs + 1, "nops", a.nops, "lines", len(a.lines), file=sys.stderr)
```

```python
import sys, argparse
from asmlib import Asm

NAME = "parallel_sum__sliding_block_cached__dense_activation_silu__decode"
HEADER = open("cdna_kernels/%s.s.ref" % NAME).read().split("; Override launch")[0]

ap = argparse.ArgumentParser()
ap.add_argument("--stamps", action="store_true")
ap.add_argument("--out", default="cdna_kernels/%s.s" % NAME)
ap.add_argument("--lds", type=int, default=12288)
ap.add_argument("--sleep", type=int, default=1)
ap.add_argument("--kstart", type=int, default=0)
ap.add_argument("--wlate", type=int, default=0)
ap.add_argument("--throttle", type=int, default=0)
ap.add_argument("--local", type=int, default=1)
ap.add_argument("--dbg", type=int, default=0)
ap.add_argument("--lim", type=int, default=0)
args = ap.parse_args()
STAMPS = args.stamps
NT = " nt"

WS_GEN = 0x0
WS_QP = 0x20000
WS_HP = 0x40000
WS_O = 0x100000
WS_OUT = 0x200000
WS_STAMP = 0x400000
L_XN = 0
L_Q = 1024
L_O = 2048
L_M = 10240
L_L = 10304
L_X = 10368
L_H = 10624
L_E = 10656
L_F = 10688
L_Y = 10752

DPPALL = "row_mask:0xf bank_mask:0xf"
LOG2E = 0x3fb8aa3b
SCALE = 0x3db504f3
SPIN = 1 << 18

a = Asm()
nstamp = [0]
def stamp():
    if STAMPS:
        k = nstamp[0]; nstamp[0] += 1
        assert k < 14
        a("s_memrealtime s[%d:%d]" % (66 + 2 * k, 67 + 2 * k))
def stamp_reset(n):
    nstamp[0] = n
def stamp_flush(n=None):
    if STAMPS:
        n = nstamp[0] if n is None else n
        a("s_waitcnt lgkmcnt(0)")
        a("s_mov_b64 exec, -1")
        a("v_mov_b32 v2, 0")
        a("s_getreg_b32 s64, hwreg(HW_REG_XCC_ID)")
        for k in range(n):
            a("v_writelane_b32 v2, s%d, %d" % (66 + 2 * k, k))
        a("v_writelane_b32 v2, s64, 14")
        a("v_writelane_b32 v2, s65, 15")
        a("s_lshl_b32 s64, s2, 3")
        a("s_add_u32 s64, s64, s28")
        a("s_lshl_b32 s64, s64, 6")
        a("s_add_u32 s64, s64, 0x%x" % WS_STAMP)
        a("v_mbcnt_lo_u32_b32 v3, -1, 0")
        a("v_lshl_add_u32 v3, v3, 2, s64")
        a("s_mov_b64 exec, 0xffff")
        a("global_store_dword v3, v2, s[24:25]")

def bf16r(dst, src):
    a("v_cvt_pk_bf16_f32 %s, %s, %s" % (dst, src, src))
    a("v_and_b32 %s, 0xffff0000, %s" % (dst, dst))

def row_allreduce(op, regs, shifts=(8, 4, 2, 1)):
    for sh in shifts:
        for r in regs:
            a("%s_dpp %s, %s, %s row_ror:%d %s" % (op, r, r, r, sh, DPPALL))

def swap_reduce(op, r, t, which):
    a("v_mov_b32 %s, %s" % (t, r))
    a("v_permlane%d_swap_b32 %s, %s" % (which, r, t))
    a("%s %s, %s, %s" % (op, r, r, t))

def cross_rows_allreduce(op, r, t):
    swap_reduce(op, r, t, 16)
    swap_reduce(op, r, t, 32)

def transpose_reduce8(acc):
    for d in range(4):
        a("v_permlane32_swap_b32 v%d, v%d" % (acc[d], acc[d + 4]))
    for d in range(4):
        a("v_add_f32 v%d, v%d, v%d" % (acc[d], acc[d], acc[d + 4]))
    for d in range(2):
        a("v_permlane16_swap_b32 v%d, v%d" % (acc[d], acc[d + 2]))
    for d in range(2):
        a("v_add_f32 v%d, v%d, v%d" % (acc[d], acc[d], acc[d + 2]))

def unpack(lo, hi, src):
    a("v_lshlrev_b32 v%d, 16, v%d" % (lo, src))
    a("v_and_b32 v%d, 0xffff0000, v%d" % (hi, src))

def perm_pair(dst, src, m):
    for c in range(4):
        a("v_perm_b32 v%d, v%d, v%d, s37" % (dst + 4 * (2 * c) + m, src + 4 * (2 * m + 1) + c, src + 4 * (2 * m) + c))
        a("v_perm_b32 v%d, v%d, v%d, s38" % (dst + 4 * (2 * c + 1) + m, src + 4 * (2 * m + 1) + c, src + 4 * (2 * m) + c))

MASKS = 40
def poll_issue(slots, masked):
    for i, (dst, addr, off) in enumerate(slots):
        if masked:
            a("s_mov_b64 exec, s[%d:%d]" % (MASKS + 2 * i, MASKS + 2 * i + 1))
        a("global_load_dwordx4 v[%d:%d], v%d, s[24:25] offset:%d sc1" % (dst, dst + 3, addr, off))
    if masked:
        a("s_mov_b64 exec, -1")

def poll_check_loop(name, slots, count=False):
    a("s_mov_b32 s35, %d" % SPIN)
    a.label("L_%s" % name)
    a("s_waitcnt vmcnt(0)")
    for i, (dst, addr, off) in enumerate(slots):
        m = MASKS + 2 * i
        a("v_cmp_ne_u32 s[%d:%d], s29, v%d" % (m, m + 1, dst + 3))
    if len(slots) == 1:
        a("s_cmp_eq_u64 s[%d:%d], 0" % (MASKS, MASKS + 1))
        a("s_cbranch_scc1 L_%s_done" % name)
    else:
        a("s_or_b64 s[56:57], s[%d:%d], s[%d:%d]" % (MASKS, MASKS + 1, MASKS + 2, MASKS + 3))
        for i in range(2, len(slots)):
            m = MASKS + 2 * i
            a("s_or_b64 s[56:57], s[56:57], s[%d:%d]" % (m, m + 1))
        a("s_cbranch_scc0 L_%s_done" % name)
    a("s_sub_u32 s35, s35, 1")
    a("s_cbranch_scc1 L_%s_done" % name)
    if args.sleep:
        a("s_sleep %d" % args.sleep)
    poll_issue(slots, True)
    a("s_branch L_%s" % name)
    a.label("L_%s_done" % name)
    if count and STAMPS:
        a("s_sub_u32 s65, %d, s35" % SPIN)

a("s_cmp_ge_u32 s2, 256")
a("s_cbranch_scc1 L_end")
if STAMPS:
    for k in range(1, 14):
        a("s_mov_b32 s%d, 0" % (66 + 2 * k))
    a("s_mov_b32 s65, 0")
stamp()
if args.dbg or args.lim:
    a("s_memrealtime s[60:61]")
a("s_load_dwordx16 s[4:19], s[0:1], 0")
a("s_load_dwordx4 s[20:23], s[0:1], 64")
a("s_load_dwordx2 s[24:25], s[0:1], 80")
a("v_lshrrev_b32 v2, 6, v0")
a("v_and_b32 v1, 63, v0")
a("v_readfirstlane_b32 s28, v2")
a("s_and_b32 s26, s2, 7")
a("s_lshr_b32 s27, s2, 3")
a("s_mov_b32 s37, 0x05040100")
a("s_mov_b32 s38, 0x07060302")
a("s_getreg_b32 s34, hwreg(HW_REG_XCC_ID)")
a("v_lshrrev_b32 v125, 4, v1")
a("v_and_b32 v126, 7, v1")
a("v_lshrrev_b32 v124, 3, v1")
a("s_cmp_lt_u32 s28, 4")
a("s_cbranch_scc1 L_w")

KR = 4
VR = 36
BR = 68
QG = 100
a("s_sub_u32 s36, s28, 4")
a("s_lshl_b32 s30, s26, 24")
a("s_lshl_b32 s31, s27, 15")
a("s_add_u32 s30, s30, s31")
a("s_lshl_b32 s31, s36, 13")
a("s_add_u32 s30, s30, s31")
a("s_add_u32 s30, s30, 0x%x" % (0xF00000 + 4096))
a("v_bfe_u32 v123, v1, 2, 2")
a("v_and_b32 v122, 3, v1")
a("v_lshlrev_b32 v127, 8, v123")
a("v_lshl_add_u32 v127, v125, 6, v127")
a("v_lshl_add_u32 v127, v122, 4, v127")
a("v_add_u32 v2, s30, v127")
a("v_lshl_add_u32 v3, v1, 4, s30")
a("s_lshl_b32 s30, s26, 14")
a("s_lshl_b32 s31, s36, 12")
a("s_add_u32 s30, s30, s31")
a("s_add_u32 s30, s30, 0x%x" % WS_QP)
a("v_and_b32 v120, 31, v1")
a("v_lshrrev_b32 v121, 5, v1")
a("v_lshlrev_b32 v120, 4, v120")
a("v_lshl_add_u32 v120, v121, 11, v120")
a("v_add_u32 v120, s30, v120")
a("s_waitcnt lgkmcnt(0)")
a("s_load_dword s29, s[24:25], 0x%x" % WS_GEN)
a("s_barrier")
stamp()
for j in range(8):
    a("global_load_dwordx4 v[%d:%d], v2, s[6:7] offset:%d%s" % (KR + 4 * j, KR + 4 * j + 3, (j - 4) * 1024, NT))
for j in range(8):
    if args.throttle:
        a("s_waitcnt vmcnt(%d)" % (args.throttle - 1))
    a("global_load_dwordx4 v[%d:%d], v3, s[8:9] offset:%d%s" % (VR + 4 * j, VR + 4 * j + 3, (j - 4) * 1024, NT))
stamp()
a("s_mov_b32 s39, 0x%x" % LOG2E)
a("v_bfe_u32 v118, v1, 3, 2")
a("v_lshlrev_b32 v119, 4, v126")
a("v_lshl_add_u32 v119, v118, 2, v119")
a("v_lshl_add_u32 v119, v121, 7, v119")
a("s_lshl_b32 s30, s36, 8")
a("v_add_u32 v119, s30, v119")
a("s_waitcnt lgkmcnt(0)")
a("s_add_u32 s29, s29, 1")
a("s_barrier")
qslots = [(QG + 4 * rb, 120, 512 * rb) for rb in range(4)]
poll_issue(qslots, False)
stamp()
if not args.wlate:
    a("s_barrier")
for m in range(4):
    a("s_waitcnt vmcnt(%d)" % (10 - 2 * m))
    perm_pair(BR, VR, m)
stamp()
poll_check_loop("pollq", qslots, True)
stamp()
a("v_add_f32 v%d, v%d, v%d" % (QG, QG, QG + 4))
a("v_add_f32 v%d, v%d, v%d" % (QG + 1, QG + 1, QG + 5))
a("v_add_f32 v%d, v%d, v%d" % (QG + 8, QG + 8, QG + 12))
a("v_add_f32 v%d, v%d, v%d" % (QG + 9, QG + 9, QG + 13))
a("v_add_f32 v%d, v%d, v%d" % (QG, QG, QG + 8))
a("v_add_f32 v%d, v%d, v%d" % (QG + 1, QG + 1, QG + 9))
a("v_cvt_pk_bf16_f32 v%d, v%d, v%d" % (QG, QG, QG + 1))
a("ds_write_b32 v119, v%d offset:%d" % (QG, L_Q))
a("v_xor_b32 v%d, s34, v%d" % (QG + 2, QG + 2))
a("v_xor_b32 v%d, s34, v%d" % (QG + 6, QG + 6))
a("v_xor_b32 v%d, s34, v%d" % (QG + 10, QG + 10))
a("v_xor_b32 v%d, s34, v%d" % (QG + 14, QG + 14))
a("v_or3_b32 v%d, v%d, v%d, v%d" % (QG + 2, QG + 2, QG + 6, QG + 10))
a("v_or_b32 v%d, v%d, v%d" % (QG + 2, QG + 2, QG + 14))
a("v_cmp_ne_u32 vcc, 0, v%d" % (QG + 2))
a("s_or_b32 s31, vcc_lo, vcc_hi")
a("s_lshl_b32 s30, s36, 2")
a("v_mov_b32 v2, s30")
a("v_mov_b32 v3, s31")
a("ds_write_b32 v2, v3 offset:%d" % L_F)
a("s_waitcnt lgkmcnt(0)")
a("s_barrier")
a("ds_read_b128 v[100:103], v127 offset:%d" % L_Q)
a("s_waitcnt lgkmcnt(0)")
stamp()
DR = VR
for j in range(8):
    a("v_mfma_f32_16x16x32_bf16 v[%d:%d], v[%d:%d], v[100:103], 0" % (DR + 4 * j, DR + 4 * j + 3, KR + 4 * j, KR + 4 * j + 3))
S = list(range(104, 112))
for j in range(8):
    a("v_mov_b32_dpp v%d, v%d quad_perm:[0,0,0,0] %s" % (S[j], DR + 4 * j, DPPALL))
for b in range(1, 4):
    for j in range(8):
        a("v_add_f32_dpp v%d, v%d, v%d quad_perm:[%d,%d,%d,%d] %s" % (S[j], DR + 4 * j + b, S[j], b, b, b, b, DPPALL))
T = list(range(112, 116))
for m in range(4):
    a("v_cvt_pk_bf16_f32 v%d, v%d, v%d" % (T[m], S[2 * m], S[2 * m + 1]))
for m in range(4):
    unpack(S[2 * m], S[2 * m + 1], T[m])
for j in range(8):
    a("v_mul_f32 v%d, 0x%x, v%d" % (S[j], SCALE, S[j]))
for m in range(4):
    a("v_cvt_pk_bf16_f32 v%d, v%d, v%d" % (T[m], S[2 * m], S[2 * m + 1]))
for m in range(4):
    unpack(S[2 * m], S[2 * m + 1], T[m])
a("v_max3_f32 v116, v%d, v%d, v%d" % (S[0], S[1], S[2]))
a("v_max3_f32 v117, v%d, v%d, v%d" % (S[3], S[4], S[5]))
a("v_max3_f32 v116, v116, v%d, v%d" % (S[6], S[7]))
a("v_max_f32 v116, v116, v117")
cross_rows_allreduce("v_max_f32", "v116", "v117")
a("v_mul_f32 v116, s39, v116")
for j in range(8):
    a("v_fma_f32 v%d, v%d, s39, -v116" % (S[j], S[j]))
for j in range(8):
    a("v_exp_f32 v%d, v%d" % (S[j], S[j]))
for r in range(VR, VR + 4):
    a("v_mov_b32 v%d, 0x3f803f80" % r)
for m in range(4):
    a("v_cvt_pk_bf16_f32 v%d, v%d, v%d" % (T[m], S[2 * m], S[2 * m + 1]))
a("v_lshl_add_u32 v118, v123, 4, s30")
a("v_mfma_f32_16x16x32_bf16 v[100:103], v[112:115], v[%d:%d], 0" % (VR, VR + 3))
for d in range(8):
    a("v_mfma_f32_16x16x32_bf16 v[%d:%d], v[112:115], v[%d:%d], 0" % (KR + 4 * d, KR + 4 * d + 3, BR + 4 * d, BR + 4 * d + 3))
a("ds_write_b32 v118, v116 offset:%d" % L_M)
a("s_lshl_b32 s31, s36, 11")
a("s_add_u32 s31, s31, %d" % L_O)
a("v_and_b32 v119, 15, v1")
a("v_lshlrev_b32 v119, 2, v119")
a("v_lshl_add_u32 v119, v125, 9, v119")
a("v_add_u32 v119, s31, v119")
a("v_lshl_add_u32 v118, v125, 4, s30")
a("ds_write_b32 v118, v100 offset:%d" % L_L)
for d in range(0, 8, 2):
    a("ds_write2_b32 v119, v%d, v%d offset0:%d offset1:%d" % (KR + 4 * d, KR + 4 * d + 4, 16 * d, 16 * d + 16))
a("s_lshl_b32 s30, s36, 4")
a("v_mov_b32 v2, s30")
a("s_lshl_b32 s31, s36, 9")
a("v_lshl_add_u32 v3, v1, 3, s31")
a("v_mov_b32 v64, 0")
a("ds_read_b128 v[60:63], v64 offset:%d" % L_F)
stamp()
a("s_waitcnt lgkmcnt(0)")
a("s_barrier")
a("ds_read_b128 v[40:43], v2 offset:%d" % L_M)
a("ds_read_b128 v[44:47], v2 offset:%d" % L_L)
for w in range(4):
    a("ds_read_b64 v[%d:%d], v3 offset:%d" % (48 + 2 * w, 49 + 2 * w, L_O + 2048 * w))
a("s_lshl_b32 s30, s26, 5")
a("s_add_u32 s30, s30, s27")
a("s_lshl_b32 s30, s30, 12")
a("s_add_u32 s30, s30, 0x%x" % WS_O)
a("v_lshl_add_u32 v3, v3, 1, s30")
a("v_or3_b32 v60, v60, v61, v62")
a("v_or_b32 v60, v60, v63")
a("v_mov_b32 v59, s29")
a("v_readfirstlane_b32 s33, v60")
a("s_waitcnt lgkmcnt(4)")
a("v_max3_f32 v64, v40, v41, v42")
a("v_max_f32 v64, v64, v43")
for w in range(4):
    a("v_sub_f32 v%d, v%d, v64" % (40 + w, 40 + w))
for w in range(4):
    a("v_exp_f32 v%d, v%d" % (40 + w, 40 + w))
a("v_mul_f32 v65, v40, v44")
for w in range(1, 4):
    a("v_fmac_f32 v65, v%d, v%d" % (40 + w, 44 + w))
a("s_waitcnt lgkmcnt(0)")
a("v_mul_f32 v56, v40, v48")
a("v_mul_f32 v57, v40, v49")
a("v_rcp_f32 v66, v65")
a("v_log_f32 v58, v65")
for w in range(1, 4):
    a("v_fmac_f32 v56, v%d, v%d" % (40 + w, 48 + 2 * w))
    a("v_fmac_f32 v57, v%d, v%d" % (40 + w, 49 + 2 * w))
a("v_add_f32 v58, v58, v64")
a("v_mul_f32 v56, v56, v66")
a("v_mul_f32 v57, v57, v66")
if args.local:
    a("s_cmp_lg_u32 s33, 0")
    a("s_cbranch_scc1 L_o_remote")
    a("global_store_dwordx4 v3, v[56:59], s[24:25]")
    a("s_branch L_o_done")
    a.label("L_o_remote")
a("global_store_dwordx4 v3, v[56:59], s[24:25] sc1")
a.label("L_o_done")
stamp()
a("s_barrier")
stamp()
a("s_branch L_ho3")

a.label("L_w")
a.forget()
stamp_reset(1)
WR = 4
a("s_cmp_ge_u32 s28, 2")
a("s_cbranch_scc1 L_w_idle")
a("v_lshlrev_b32 v2, 4, v1")
a("s_cmp_lg_u32 s28, 0")
a("s_cbranch_scc1 L_f_load")
a("s_and_b32 s30, s27, 3")
a("s_lshl_b32 s30, s30, 20")
a("s_lshl_b32 s31, s26, 10")
a("s_add_u32 s30, s30, s31")
a("s_lshr_b32 s31, s27, 2")
a("s_lshl_b32 s31, s31, 7")
a("s_add_u32 s30, s30, s31")
a("v_lshlrev_b32 v3, 16, v124")
a("v_lshl_add_u32 v3, v126, 4, v3")
a("v_add_u32 v3, s30, v3")
a("s_movk_i32 s32, 0x2000")
a("s_waitcnt lgkmcnt(0)")
a("global_load_dwordx4 v[100:103], v2, s[4:5]")
a("s_load_dword s29, s[24:25], 0x%x" % WS_GEN)
for G in range(2):
    for jj in range(8):
        j = 8 * G + jj
        a("global_load_dwordx4 v[%d:%d], v3, s[10:11]%s" % (WR + 4 * j, WR + 4 * j + 3, NT))
        if j < 15:
            if jj == 7:
                a("v_add_u32 v3, 0x%x, v3" % (57 * 8192))
            else:
                a("v_add_u32 v3, s32, v3")
if args.kstart:
    a("s_waitcnt vmcnt(%d)" % (17 - args.kstart))
a("s_barrier")
stamp()
a("s_waitcnt vmcnt(16)")
a("s_branch L_ln")
a.label("L_f_load")
a("s_min_u32 s31, s27, 27")
a("s_lshl_b32 s31, s31, 7")
a("s_mul_i32 s30, s26, %d" % (64 * 3584))
a("s_add_u32 s30, s30, s31")
a("v_mul_u32_u24 v3, %d, v124" % (8 * 3584))
a("v_lshl_add_u32 v3, v126, 4, v3")
a("v_add_u32 v3, s30, v3")
a("s_movk_i32 s32, 3584")
a("s_waitcnt lgkmcnt(0)")
a("global_load_dwordx4 v[100:103], v2, s[4:5]")
a("s_load_dword s29, s[24:25], 0x%x" % WS_GEN)
for jj in range(8):
    a("global_load_dwordx4 v[%d:%d], v3, s[16:17]%s" % (WR + 32 + 4 * jj, WR + 32 + 4 * jj + 3, NT))
    if jj < 7:
        a("v_add_u32 v3, s32, v3")
a("s_barrier")
stamp_reset(1)
stamp()
a("s_waitcnt vmcnt(8)")
a.label("L_ln")
XV = 104
for i in range(4):
    unpack(XV + 2 * i, XV + 1 + 2 * i, 100 + i)
a("v_add_f32 v120, v104, v105")
a("v_add_f32 v121, v106, v107")
a("v_add_f32 v122, v108, v109")
a("v_add_f32 v123, v110, v111")
a("v_add_f32 v120, v120, v121")
a("v_add_f32 v122, v122, v123")
a("v_add_f32 v120, v120, v122")
row_allreduce("v_add_f32", ["v120"])
cross_rows_allreduce("v_add_f32", "v120", "v121")
a("v_mul_f32 v120, 0x3b000000, v120")
for i in range(8):
    a("v_sub_f32 v%d, v%d, v120" % (112 + i, XV + i))
a("v_mul_f32 v121, v112, v112")
a("v_mul_f32 v122, v113, v113")
for i in range(2, 8, 2):
    a("v_fmac_f32 v121, v%d, v%d" % (112 + i, 112 + i))
    a("v_fmac_f32 v122, v%d, v%d" % (113 + i, 113 + i))
a("v_add_f32 v121, v121, v122")
bf16r("v120", "v120")
row_allreduce("v_add_f32", ["v121"])
cross_rows_allreduce("v_add_f32", "v121", "v122")
for i in range(8):
    a("v_sub_f32 v%d, v%d, v120" % (XV + i, XV + i))
a("v_mul_f32 v121, 0x3b000000, v121")
bf16r("v121", "v121")
a("v_add_f32 v121, 0x3727c5ac, v121")
bf16r("v121", "v121")
a("v_sqrt_f32 v121, v121")
for i in range(4):
    a("v_cvt_pk_bf16_f32 v%d, v%d, v%d" % (100 + i, XV + 2 * i, XV + 2 * i + 1))
bf16r("v121", "v121")
a("v_rcp_f32 v121, v121")
for i in range(4):
    unpack(XV + 2 * i, XV + 1 + 2 * i, 100 + i)
for i in range(8):
    a("v_mul_f32 v%d, v%d, v121" % (XV + i, XV + i))
for i in range(4):
    a("v_cvt_pk_bf16_f32 v%d, v%d, v%d" % (100 + i, XV + 2 * i, XV + 2 * i + 1))
a("ds_write_b128 v2, v[100:103] offset:%d" % L_XN)
a("v_and_b32 v127, 1, v1")
a("v_lshl_add_u32 v127, v125, 1, v127")
a("v_lshlrev_b32 v127, 4, v127")
a("s_waitcnt lgkmcnt(0)")
a("s_add_u32 s29, s29, 1")
a("v_mov_b32 v122, s34")
a("v_mov_b32 v123, s29")
stamp()
a("s_cmp_lg_u32 s28, 0")
a("s_cbranch_scc1 L_f")
a("s_and_b32 s30, s27, 3")
a("s_lshl_b32 s30, s30, 8")
a("v_add_u32 v127, s30, v127")
a("ds_read_b128 v[104:107], v127 offset:%d" % L_XN)
a("ds_read_b128 v[108:111], v127 offset:%d" % (L_XN + 128))
a("s_lshl_b32 s30, s26, 14")
a("s_lshl_b32 s31, s27, 9")
a("s_add_u32 s30, s30, s31")
a("s_add_u32 s30, s30, 0x%x" % WS_QP)
a("v_lshlrev_b32 v3, 4, v126")
a("v_lshl_add_u32 v3, v125, 7, v3")
a("v_add_u32 v3, s30, v3")
for m in range(4):
    a("s_waitcnt vmcnt(%d)" % (14 - 2 * m))
    perm_pair(BR, WR, m)
a("s_waitcnt lgkmcnt(0)")
for d in range(8):
    a("v_mfma_f32_16x16x32_bf16 v[%d:%d], v[104:107], v[%d:%d], 0" % (WR + 4 * d, WR + 4 * d + 3, BR + 4 * d, BR + 4 * d + 3))
a("s_branch L_grp1")
a.label("L_f")
a("s_lshl_b32 s30, s26, 7")
a("v_add_u32 v127, s30, v127")
a("ds_read_b128 v[108:111], v127 offset:%d" % L_XN)
a("s_lshl_b32 s30, s27, 12")
a("s_lshl_b32 s31, s26, 6")
a("s_add_u32 s30, s30, s31")
a("s_add_u32 s30, s30, 0x%x" % WS_HP)
a("v_bfe_u32 v2, v1, 2, 1")
a("v_lshl_add_u32 v2, v125, 1, v2")
a("v_and_b32 v3, 3, v1")
a("v_lshlrev_b32 v3, 4, v3")
a("v_lshl_add_u32 v3, v2, 9, v3")
a("v_add_u32 v3, s30, v3")
for d in range(8):
    a("v_mov_b32 v%d, 0" % (WR + 4 * d))
    a("v_mov_b32 v%d, 0" % (WR + 4 * d + 1))
a("s_waitcnt lgkmcnt(0)")
a.label("L_grp1")
for m in range(4):
    a("s_waitcnt vmcnt(%d)" % (6 - 2 * m))
    perm_pair(BR, WR + 32, m)
for d in range(8):
    a("v_mfma_f32_16x16x32_bf16 v[%d:%d], v[108:111], v[%d:%d], v[%d:%d]" % (WR + 4 * d, WR + 4 * d + 3, BR + 4 * d, BR + 4 * d + 3, WR + 4 * d, WR + 4 * d + 3))
for u in range(4):
    for e in range(2):
        d = 2 * u + e
        a("v_add_f32_dpp v%d, v%d, v%d row_ror:8 row_mask:0x%x bank_mask:0xf" % (120 + e, WR + 4 * d + 1, WR + 4 * d, 1 << u))
a("s_mov_b32 exec_lo, 0x00ff00ff")
a("s_mov_b32 exec_hi, 0x00ff00ff")
a("global_store_dwordx4 v3, v[120:123], s[24:25] sc1")
a("s_mov_b64 exec, -1")
stamp()
a("s_branch L_w_common")
a.label("L_w_idle")
a.forget()
a("s_waitcnt lgkmcnt(0)")
a("s_load_dword s29, s[24:25], 0x%x" % WS_GEN)
a("s_barrier")
a("s_waitcnt lgkmcnt(0)")
a("s_add_u32 s29, s29, 1")
a.label("L_w_common")
a.forget()
stamp_reset(4)
a("s_lshl_b32 s30, s26, 9")
a("s_lshr_b32 s31, s27, 3")
a("s_lshl_b32 s31, s31, 7")
a("s_add_u32 s30, s30, s31")
a("s_and_b32 s31, s27, 7")
a("s_add_u32 s30, s30, s31")
a("s_lshl_b32 s30, s30, 10")
a("s_lshl_b32 s31, s28, 8")
a("s_add_u32 s30, s30, s31")
a("v_and_b32 v116, 15, v1")
a("v_lshlrev_b32 v116, 4, v116")
a("v_lshl_add_u32 v117, v125, 15, v116")
a("v_add_u32 v117, s30, v117")
a("s_min_u32 s32, s27, 27")
a("s_lshl_b32 s30, s32, 6")
a("s_and_b32 s33, s26, 1")
a("s_lshl_b32 s33, s33, 5")
a("s_add_u32 s30, s30, s33")
a("s_and_b32 s33, s26, 6")
a("s_add_u32 s30, s30, s33")
a("s_lshl_b32 s30, s30, 10")
a("s_add_u32 s30, s30, s31")
a("v_lshl_add_u32 v118, v125, 13, v116")
a("v_add_u32 v118, s30, v118")
a("s_movk_i32 s33, 0x2000")
a("s_lshl_b32 s30, s32, 12")
a("s_lshl_b32 s31, s26, 9")
a("s_add_u32 s30, s30, s31")
a("s_add_u32 s30, s30, 0x%x" % WS_HP)
a("v_and_b32 v119, 31, v1")
a("v_lshl_add_u32 v119, v119, 4, s30")
a("s_lshl_b32 s30, s26, 17")
a("s_lshl_b32 s31, s27, 7")
a("s_add_u32 s30, s30, s31")
a("s_lshl_b32 s31, s28, 15")
a("s_add_u32 s30, s30, s31")
a("s_add_u32 s30, s30, 0x%x" % WS_O)
a("v_lshlrev_b32 v115, 12, v124")
a("v_lshl_add_u32 v115, v126, 4, v115")
a("v_add_u32 v115, s30, v115")
a("s_barrier")
a("s_barrier")
stamp()
hslots = [(4, 119, 0)]
a("s_cmp_lg_u32 s28, 2")
a("s_cbranch_scc1 L_noh1")
poll_issue(hslots, False)
a.label("L_noh1")
OR_ = 36
a("global_load_dwordx4 v[%d:%d], v118, s[18:19]%s" % (OR_, OR_ + 3, NT))
a("global_load_dwordx4 v[%d:%d], v118, s[18:19] offset:1024%s" % (OR_ + 4, OR_ + 7, NT))
for i in range(4):
    a("global_load_dwordx4 v[%d:%d], v117, s[12:13]%s" % (OR_ + 8 + 4 * i, OR_ + 8 + 4 * i + 3, NT))
    if i < 3:
        a("v_add_u32 v117, s33, v117")
if not args.wlate:
    a("s_barrier")
stamp()
a("s_cmp_lg_u32 s28, 2")
a("s_cbranch_scc1 L_noh2")
a("s_waitcnt vmcnt(6)")
a("v_cmp_ne_u32 vcc, s29, v7")
a("s_cbranch_vccz L_pollh_done")
poll_check_loop("pollh", hslots)
row_allreduce("v_add_f32", ["v4", "v5"], (8, 4))
swap_reduce("v_add_f32", "v4", "v8", 16)
swap_reduce("v_add_f32", "v5", "v9", 16)
a("v_cvt_pk_bf16_f32 v6, v4, v5")
unpack(4, 5, 6)
for r in (4, 5):
    a("v_mul_f32 v%d, 0x%x, v%d" % (r + 2, LOG2E | 0x80000000, r))
for r in (4, 5):
    a("v_exp_f32 v%d, v%d" % (r + 2, r + 2))
for r in (4, 5):
    a("v_add_f32 v%d, 1.0, v%d" % (r + 2, r + 2))
for r in (4, 5):
    a("v_rcp_f32 v%d, v%d" % (r + 2, r + 2))
for r in (4, 5):
    a("v_mul_f32 v%d, v%d, v%d" % (r, r, r + 2))
a("v_cvt_pk_bf16_f32 v6, v4, v5")
a("s_cmp_lt_u32 s27, 28")
a("s_cselect_b32 s30, -1, 0")
a("v_and_b32 v6, s30, v6")
unpack(12, 13, 6)
a("v_and_b32 v2, 3, v1")
a("v_lshlrev_b32 v2, 3, v2")
a("ds_write_b64 v2, v[12:13] offset:%d" % L_H)
a("s_waitcnt lgkmcnt(0)")
a.label("L_noh2")
a.forget()
stamp()
a("v_lshlrev_b32 v2, 3, v125")
a("s_barrier")
stamp()
o2slots = [(4, 115, 0)]
poll_issue(o2slots, False)
a("ds_read_b64 v[20:21], v2 offset:%d" % L_H)
UR = 60
OA = list(range(24, 32))
a("s_waitcnt vmcnt(5)")
for i in range(2):
    for c in range(4):
        unpack(UR + 8 * i + 2 * c, UR + 1 + 8 * i + 2 * c, OR_ + 4 * i + c)
a("s_waitcnt lgkmcnt(0)")
for c in range(8):
    a("v_mul_f32 v%d, v%d, v20" % (OA[c], UR + c))
for c in range(8):
    a("v_fmac_f32 v%d, v%d, v21" % (OA[c], UR + 8 + c))
a("s_waitcnt vmcnt(1)")
for i in range(2, 6):
    for c in range(4):
        unpack(UR + 8 * i + 2 * c, UR + 1 + 8 * i + 2 * c, OR_ + 4 * i + c)
a("v_lshrrev_b32 v2, 5, v1")
a("v_lshl_add_u32 v2, v126, 1, v2")
a("s_lshl_b32 s30, s28, 2")
a("v_lshl_add_u32 v2, v2, 4, s30")
a("v_mov_b32 v32, s30")
a("v_lshlrev_b32 v3, 6, v125")
a("v_mov_b32 v33, 0")
stamp()
poll_check_loop("poll2", o2slots, True)
stamp()
a("v_max_f32_dpp v8, v6, v6 row_ror:8 %s" % DPPALL)
cross_rows_allreduce("v_max_f32", "v8", "v9")
a("v_sub_f32 v6, v6, v8")
a("v_exp_f32 v6, v6")
a("v_mul_f32 v4, v4, v6")
a("v_mul_f32 v5, v5, v6")
a("v_add_f32_dpp v9, v6, v6 row_ror:8 %s" % DPPALL)
a("v_permlane32_swap_b32 v4, v5")
a("v_mov_b32 v10, v9")
a("v_add_f32 v4, v4, v5")
a("v_permlane16_swap_b32 v9, v10")
a("v_mov_b32 v5, v4")
a("v_add_f32 v9, v9, v10")
a("v_permlane16_swap_b32 v4, v5")
a("v_mov_b32 v10, v9")
a("v_add_f32 v4, v4, v5")
a("v_permlane32_swap_b32 v9, v10")
a("v_add_f32_dpp v4, v4, v4 row_ror:8 %s" % DPPALL)
a("v_add_f32 v9, v9, v10")
a("ds_write_b32 v2, v4 offset:%d" % L_X)
a("ds_write2_b32 v32, v8, v9 offset0:%d offset1:%d" % (0, 4)) if False else None
a("v_add_u32 v32, %d, v32" % L_E)
a("ds_write2_b32 v32, v8, v9 offset0:0 offset1:4")
a("s_waitcnt lgkmcnt(0)")
a("s_barrier")
a("ds_read_b128 v[108:111], v33 offset:%d" % L_E)
a("ds_read_b128 v[112:115], v33 offset:%d" % (L_E + 16))
for i in range(4):
    a("ds_read_b128 v[%d:%d], v3 offset:%d" % (4 + 4 * i, 7 + 4 * i, L_X + 16 * i))
a("s_lshl_b32 s30, s2, 12")
a("s_lshl_b32 s31, s28, 10")
a("s_add_u32 s30, s30, s31")
a("s_add_u32 s30, s30, 0x%x" % WS_OUT)
a("v_lshl_add_u32 v2, v1, 4, s30")
a("s_waitcnt lgkmcnt(4)")
a("v_max3_f32 v20, v108, v109, v110")
a("v_max_f32 v20, v20, v111")
for w in range(4):
    a("v_sub_f32 v%d, v%d, v20" % (108 + w, 108 + w))
for w in range(4):
    a("v_exp_f32 v%d, v%d" % (108 + w, 108 + w))
a("v_mul_f32 v21, v108, v112")
for w in range(1, 4):
    a("v_fmac_f32 v21, v%d, v%d" % (108 + w, 112 + w))
a("s_waitcnt lgkmcnt(0)")
a("v_rcp_f32 v21, v21")
for i in range(4):
    a("v_mul_f32 v%d, v%d, v108" % (4 + 4 * i, 4 + 4 * i))
for w in range(1, 4):
    for i in range(4):
        a("v_fmac_f32 v%d, v%d, v%d" % (4 + 4 * i, 4 + 4 * i + w, 108 + w))
for i in range(4):
    a("v_mul_f32 v%d, v%d, v21" % (4 + 4 * i, 4 + 4 * i))
a("v_cvt_pk_bf16_f32 v20, v4, v8")
a("v_cvt_pk_bf16_f32 v21, v12, v16")
unpack(4, 5, 20)
unpack(6, 7, 21)
for i in range(4):
    for c in range(8):
        a("v_fmac_f32 v%d, v%d, v%d" % (OA[c], UR + 16 + 8 * i + c, 4 + i))
transpose_reduce8(OA)
a("v_mov_b32 v27, s29")
a("global_store_dwordx4 v2, v[24:27], s[24:25] sc1")
stamp()

a.label("L_ho3")
a.forget()
a("s_nop 1")
stamp_reset(11)
a("s_cmp_ge_u32 s2, 32")
a("s_cbranch_scc1 L_fin")
a("s_lshl_b32 s30, s28, 17")
a("s_lshl_b32 s31, s2, 7")
a("s_add_u32 s30, s30, s31")
a("s_add_u32 s30, s30, 0x%x" % WS_OUT)
a("v_lshlrev_b32 v28, 12, v124")
a("v_lshl_add_u32 v28, v126, 4, v28")
a("v_add_u32 v28, s30, v28")
a("v_add_u32 v29, 0x8000, v28")
a("v_add_u32 v30, 0x10000, v28")
a("v_add_u32 v31, 0x18000, v28")
a("s_lshr_b32 s30, s2, 3")
a("s_lshl_b32 s30, s30, 8")
a("s_and_b32 s31, s2, 1")
a("s_lshl_b32 s31, s31, 7")
a("s_add_u32 s30, s30, s31")
a("s_and_b32 s31, s2, 6")
a("s_lshl_b32 s31, s31, 1")
a("s_add_u32 s30, s30, s31")
a("v_lshl_add_u32 v32, v126, 4, s30")
a("global_load_dword v33, v32, s[4:5]")
o3slots = [(4 + 4 * i, 28 + i, 0) for i in range(4)]
poll_issue(o3slots, False)
a("v_lshrrev_b32 v2, 5, v1")
a("v_lshl_add_u32 v2, v126, 1, v2")
a("s_lshl_b32 s30, s28, 2")
a("v_lshl_add_u32 v2, v2, 5, s30")
a("v_lshlrev_b32 v3, 6, v126")
poll_check_loop("poll3", o3slots)
stamp()
a("v_add_f32 v4, v4, v8")
a("v_add_f32 v5, v5, v9")
a("v_add_f32 v12, v12, v16")
a("v_add_f32 v13, v13, v17")
a("v_add_f32 v4, v4, v12")
a("v_add_f32 v5, v5, v13")
a("v_permlane32_swap_b32 v4, v5")
a("v_add_f32 v4, v4, v5")
swap_reduce("v_add_f32", "v4", "v5", 16)
a("v_add_f32_dpp v4, v4, v4 row_ror:8 %s" % DPPALL)
a("ds_write_b32 v2, v4 offset:%d" % L_Y)
a("s_waitcnt lgkmcnt(0)")
a("s_barrier")
a("s_cmp_lg_u32 s28, 0")
a("s_cbranch_scc1 L_fin")
for i in range(4):
    a("ds_read_b128 v[%d:%d], v3 offset:%d" % (4 + 4 * i, 7 + 4 * i, L_Y + 16 * i))
unpack(34, 35, 33)
a("s_waitcnt lgkmcnt(0)")
for i in range(4):
    a("v_add_f32 v%d, v%d, v%d" % (4 + 4 * i, 4 + 4 * i, 5 + 4 * i))
    a("v_add_f32 v%d, v%d, v%d" % (6 + 4 * i, 6 + 4 * i, 7 + 4 * i))
for i in range(4):
    a("v_add_f32 v%d, v%d, v%d" % (4 + 4 * i, 4 + 4 * i, 6 + 4 * i))
a("v_add_f32 v4, v4, v8")
a("v_add_f32 v12, v12, v16")
a("v_add_f32 v4, v4, v34")
a("v_add_f32 v12, v12, v35")
if args.lim:
    a("s_memrealtime s[62:63]")
    a("s_waitcnt lgkmcnt(0)")
    a("s_sub_u32 s62, s62, s60")
    a("s_cmp_gt_u32 s62, %d" % args.lim)
    a("s_cselect_b32 s62, s62, 0")
    a("v_cvt_f32_u32 v5, s62")
    a("v_add_f32 v4, v4, v5")
a("v_cvt_pk_bf16_f32 v4, v4, v12")
a("s_mov_b64 exec, 0xff")
a("global_store_dword v32, v4, s[20:21]")
if args.dbg:
    a("s_memrealtime s[62:63]")
    a("s_waitcnt lgkmcnt(0)")
    a("s_not_b32 s60, s60")
    a("s_mov_b64 exec, 1")
    a("v_mov_b32 v5, 0")
    a("v_mov_b32 v6, s60")
    a("v_mov_b32 v7, s62")
    a("global_atomic_umax v5, v6, s[22:23]")
    a("global_atomic_umax v5, v7, s[22:23] offset:4")
a("s_cmp_lg_u32 s2, 0")
a("s_cbranch_scc1 L_fin")
a("v_mov_b32 v5, 0")
a("v_mov_b32 v6, s29")
a("global_store_dword v5, v6, s[24:25] offset:%d" % WS_GEN)
a.label("L_fin")
stamp_reset(12)
stamp()
stamp_flush(13)
a.label("L_end")
a("s_endpgm")

nv = a.maxv + 1
acc = (nv + 3) // 4 * 4
out = HEADER
out += "; @launch grid=(256,1,1) block=(512,1,1) lds=%d\n" % args.lds
out += '.amdgcn_target "amdgcn-amd-amdhsa--gfx950"\n.text\n.globl %s_kernel\n.p2align 8\n.type %s_kernel,@function\n%s_kernel:\n' % (NAME, NAME, NAME)
out += a.text()
out += """.section .rodata,"a"
.p2align 6
.amdhsa_kernel %s_kernel
  .amdhsa_next_free_vgpr %d
  .amdhsa_next_free_sgpr %d
  .amdhsa_accum_offset %d
  .amdhsa_group_segment_fixed_size 0
  .amdhsa_kernarg_size 88
  .amdhsa_user_sgpr_count 2
  .amdhsa_user_sgpr_kernarg_segment_ptr 1
  .amdhsa_system_sgpr_workgroup_id_x 1
.end_amdhsa_kernel
""" % (NAME, nv, max(a.maxs + 1, 16), acc)
open(args.out, "w").write(out)
print("vgprs", nv, "sgprs", a.maxs + 1, "nops", a.nops, "lines", len(a.lines), file=sys.stderr)
```

```python
import sys, argparse
from asmlib import Asm

NAME = "parallel_sum__sliding_block_cached__dense_activation_silu__decode"
HEADER = open("cdna_kernels/%s.s.ref" % NAME).read().split("; Override launch")[0]

ap = argparse.ArgumentParser()
ap.add_argument("--stamps", action="store_true")
ap.add_argument("--only", type=int, nargs="*", default=[])
ap.add_argument("--out", default="cdna_kernels/%s.s" % NAME)
ap.add_argument("--lds", type=int, default=16384)
ap.add_argument("--sleep", type=int, default=0)
ap.add_argument("--throttle", type=int, default=8)
ap.add_argument("--local", type=int, default=1)
ap.add_argument("--pref", type=int, default=1)
ap.add_argument("--kstart", type=int, default=0)
ap.add_argument("--opre", type=int, default=1)
ap.add_argument("--wsplit", type=int, default=0)
ap.add_argument("--pk", type=int, default=1)
ap.add_argument("--bw", type=int, default=4)
ap.add_argument("--ont", type=int, default=0)
ap.add_argument("--gd", type=int, default=2)
ap.add_argument("--b1pos", type=int, default=0)
ap.add_argument("--loadonly", type=int, default=0)
ap.add_argument("--kvpat", type=int, default=0)
ap.add_argument("--jb", type=int, default=6)
ap.add_argument("--rot", type=int, default=0)
ap.add_argument("--linq", type=int, default=0)
args = ap.parse_args()
STAMPS = args.stamps
NT = " nt"

WS_GEN = 0x0
WS_F = 0x8000
WS_QP = 0x20000
WS_HP = 0x40000
WS_O = 0x100000
WS_STAMP = 0x400000
L_XN = 0
L_Q = 1024
L_O = 2048
L_M = 10240
L_L = 10304
L_H = 10624
L_F = 10688
L_G = 10752

DPPALL = "row_mask:0xf bank_mask:0xf"
LOG2E = 0x3fb8aa3b
SCALE = 0x3db504f3
SPIN = 1 << 18

a = Asm()
def stamp(k):
    if STAMPS and (not args.only or k in (0, 13) or k in args.only):
        a("s_memrealtime s[%d:%d]" % (66 + 2 * k, 67 + 2 * k))
def stamp_flush(n):
    if STAMPS:
        a("s_waitcnt lgkmcnt(0)")
        a("s_mov_b64 exec, -1")
        a("v_mov_b32 v2, 0")
        for k in range(n):
            a("v_writelane_b32 v2, s%d, %d" % (66 + 2 * k, k))
        a("v_writelane_b32 v2, s64, 14")
        a("v_writelane_b32 v2, s65, 15")
        a("s_lshl_b32 s64, s2, 3")
        a("s_add_u32 s64, s64, s28")
        a("s_lshl_b32 s64, s64, 6")
        a("s_add_u32 s64, s64, 0x%x" % WS_STAMP)
        a("v_mbcnt_lo_u32_b32 v3, -1, 0")
        a("v_lshl_add_u32 v3, v3, 2, s64")
        a("s_mov_b64 exec, 0xffff")
        a("global_store_dword v3, v2, s[24:25]")

def bf16r(dst, src):
    a("v_cvt_pk_bf16_f32 %s, %s, %s" % (dst, src, src))
    a("v_and_b32 %s, 0xffff0000, %s" % (dst, dst))

def row_allreduce(op, regs, shifts=(8, 4, 2, 1)):
    for sh in shifts:
        for r in regs:
            a("%s_dpp %s, %s, %s row_ror:%d %s" % (op, r, r, r, sh, DPPALL))

def swap_reduce(op, r, t, which):
    a("v_mov_b32 %s, %s" % (t, r))
    a("v_permlane%d_swap_b32 %s, %s" % (which, r, t))
    a("%s %s, %s, %s" % (op, r, r, t))

def cross_rows_allreduce(op, r, t):
    swap_reduce(op, r, t, 16)
    swap_reduce(op, r, t, 32)

def transpose_reduce8(acc):
    for d in range(4):
        a("v_permlane32_swap_b32 v%d, v%d" % (acc[d], acc[d + 4]))
    for d in range(4):
        a("v_add_f32 v%d, v%d, v%d" % (acc[d], acc[d], acc[d + 4]))
    for d in range(2):
        a("v_permlane16_swap_b32 v%d, v%d" % (acc[d], acc[d + 2]))
    for d in range(2):
        a("v_add_f32 v%d, v%d, v%d" % (acc[d], acc[d], acc[d + 2]))

def pair_reduce_pp(x, y):
    a("v_permlane32_swap_b32 v%d, v%d" % (x, y))
    a("v_add_f32 v%d, v%d, v%d" % (x, x, y))
    swap_reduce("v_add_f32", "v%d" % x, "v%d" % y, 16)
    a("v_add_f32_dpp v%d, v%d, v%d row_ror:8 %s" % (x, x, x, DPPALL))
    a("v_mov_b32 v%d, v%d" % (y, x))
    a("v_permlane32_swap_b32 v%d, v%d" % (x, y))

def unpack(lo, hi, src):
    a("v_lshlrev_b32 v%d, 16, v%d" % (lo, src))
    a("v_and_b32 v%d, 0xffff0000, v%d" % (hi, src))

def perm_pair(dst, src, m):
    for c in range(4):
        a("v_perm_b32 v%d, v%d, v%d, s37" % (dst + 4 * (2 * c) + m, src + 4 * (2 * m + 1) + c, src + 4 * (2 * m) + c))
        a("v_perm_b32 v%d, v%d, v%d, s38" % (dst + 4 * (2 * c + 1) + m, src + 4 * (2 * m + 1) + c, src + 4 * (2 * m) + c))

MASKS = 40
def pload(slot, flags="sc1"):
    dst, addr, off = slot
    a("global_load_dwordx4 v[%d:%d], v%d, s[24:25] offset:%d %s" % (dst, dst + 3, addr, off, flags))

def poll(name, slots, cntreg=None, issued=False):
    a("s_mov_b32 s35, %d" % SPIN)
    if issued:
        a("s_branch L_%s_chk" % name)
    elif len(slots) > 1:
        for i in range(len(slots)):
            a("s_mov_b64 s[%d:%d], -1" % (MASKS + 2 * i, MASKS + 2 * i + 1))
    a.label("L_%s" % name)
    for i, sl in enumerate(slots):
        if len(slots) > 1:
            a("s_cmp_lg_u64 s[%d:%d], 0" % (MASKS + 2 * i, MASKS + 2 * i + 1))
            a("s_cselect_b64 exec, -1, 0")
        pload(sl)
    if len(slots) > 1:
        a("s_mov_b64 exec, -1")
    a.label("L_%s_chk" % name)
    a("s_sub_u32 s35, s35, 1")
    a("s_cbranch_scc1 L_%s_done" % name)
    a("s_waitcnt vmcnt(0)")
    if len(slots) == 1:
        a("v_cmp_ne_u32 vcc, s29, v%d" % (slots[0][0] + 3))
        a("s_cbranch_vccnz L_%s" % name)
    else:
        for i, (dst, addr, off) in enumerate(slots):
            m = MASKS + 2 * i
            a("v_cmp_ne_u32 s[%d:%d], s29, v%d" % (m, m + 1, dst + 3))
        a("s_or_b64 s[56:57], s[%d:%d], s[%d:%d]" % (MASKS, MASKS + 1, MASKS + 2, MASKS + 3))
        for i in range(2, len(slots)):
            m = MASKS + 2 * i
            a("s_or_b64 s[56:57], s[56:57], s[%d:%d]" % (m, m + 1))
        a("s_cbranch_scc1 L_%s" % name)
    a.label("L_%s_done" % name)
    if cntreg and STAMPS:
        a("s_sub_u32 %s, %d, s35" % (cntreg, SPIN - 1))

KR = 4
VR = 36
BR = 68

a("s_load_dwordx16 s[4:19], s[0:1], 0")
a("s_load_dwordx4 s[20:23], s[0:1], 64")
a("s_load_dwordx2 s[24:25], s[0:1], 80")
if STAMPS:
    for k in range(1, 14):
        a("s_mov_b32 s%d, 0" % (66 + 2 * k))
    a("s_mov_b32 s64, 0")
    a("s_mov_b32 s65, 0")
stamp(0)
a("v_lshrrev_b32 v2, 6, v0")
a("s_cmp_ge_u32 s2, 256")
a("v_readfirstlane_b32 s28, v2")
a("s_cbranch_scc1 L_end")
a("v_and_b32 v1, 63, v0")
a("s_and_b32 s26, s2, 7")
a("s_lshr_b32 s27, s2, 3")
a("v_lshrrev_b32 v125, 4, v1")
a("v_and_b32 v126, 7, v1")
a("v_lshrrev_b32 v124, 3, v1")
a("v_lshlrev_b32 v2, 4, v1")
a("s_cmp_ge_u32 s28, 4")
a("s_cbranch_scc1 L_att_setup")
a("s_and_b32 s33, s27, 24")
a("s_add_u32 s33, s33, s26")
a("s_cmp_lt_u32 s33, 28")
a("s_cselect_b32 s30, 2, 1")
a("s_cmp_ge_u32 s28, s30")
a("s_cbranch_scc1 L_idle")
a("s_and_b32 s30, s27, 3")
a("s_lshl_b32 s30, s30, 20")
a("s_lshl_b32 s31, s26, 3")
a("s_lshr_b32 s32, s27, 2")
a("s_add_u32 s31, s31, s32")
a("s_and_b32 s36, s27, 7")
a("s_mul_i32 s36, s36, %d" % (64 * 3584))
a("s_cmp_eq_u32 s28, 0")
a("s_cselect_b32 s30, s30, s36")
a("s_cselect_b32 s31, s31, s33")
a("s_movk_i32 s32, 3584")
a("s_cselect_b32 s32, 0x2000, s32")
a("s_lshl_b32 s31, s31, 7")
a("s_add_u32 s30, s30, s31")
a("s_lshl_b32 s31, s32, 3")
a("v_mul_u32_u24 v3, s31, v124")
a("v_lshl_add_u32 v3, v126, 4, v3")
a("v_add_u32 v3, s30, v3")
if args.linq:
    a("s_cmp_eq_u32 s28, 0")
    a("s_cselect_b32 s30, 14, 12")
    a("s_lshl_b32 s30, s2, s30")
    a("v_add_u32 v3, s30, v2")
    a("s_movk_i32 s32, 1024")
a("s_cmp_eq_u32 s28, 0")
a("s_waitcnt lgkmcnt(0)")
a("s_cselect_b64 s[58:59], s[10:11], s[16:17]")
a("global_load_dwordx4 v[100:103], v2, s[4:5]")
a.label("L_ld")
for j in range(8):
    a("global_load_dwordx4 v[%d:%d], v3, s[58:59]%s" % (KR + 4 * j, KR + 4 * j + 3, NT))
    if j < 7:
        a("v_add_u32 v3, s32, v3")
a("s_load_dword s29, s[24:25], 0x%x" % WS_GEN)
a("s_cmp_lg_u32 s28, 0")
a("s_cbranch_scc1 L_ld_done")
a("v_add_u32 v3, 0x%x, v3" % (1024 if args.linq else 57 * 8192))
for j in range(8):
    a("global_load_dwordx4 v[%d:%d], v3, s[58:59]%s" % (VR + 4 * j, VR + 4 * j + 3, NT))
    if j < 7:
        a("v_add_u32 v3, s32, v3")
if args.kstart:
    a("s_waitcnt vmcnt(%d)" % (17 - args.kstart))
a("s_barrier")
stamp(1)
a("s_waitcnt vmcnt(16)")
a("s_branch L_ln")
a.label("L_att_setup")
a("s_sub_u32 s36, s28, 4")
a("s_lshl_b32 s30, s26, %d" % (20 if args.kvpat == 1 else 24))
a("s_lshl_b32 s31, s27, 2")
a("s_add_u32 s31, s31, s36")
if args.rot:
    a("s_mul_i32 s32, s26, %d" % args.rot)
    a("s_add_u32 s31, s31, s32")
    a("s_and_b32 s31, s31, 127")
if args.jb:
    a("s_and_b32 s32, s31, %d" % ((1 << args.jb) - 1))
    a("s_lshl_b32 s32, s32, 10")
    a("s_add_u32 s30, s30, s32")
    a("s_lshr_b32 s31, s31, %d" % args.jb)
a("s_lshl_b32 s31, s31, %d" % (13 + args.jb))
a("s_add_u32 s30, s30, s31")
a("s_add_u32 s30, s30, 0x%x" % 0xF00000)
a("v_bfe_u32 v123, v1, 2, 2")
a("v_and_b32 v122, 3, v1")
a("v_lshlrev_b32 v127, 8, v123")
a("v_lshl_add_u32 v127, v125, 6, v127")
a("v_lshl_add_u32 v127, v122, 4, v127")
a("v_add_u32 v3, s30, v127")
a("s_mov_b32 s32, %d" % (1024 << args.jb))
a("s_waitcnt lgkmcnt(0)")
a("s_mov_b64 s[58:59], s[6:7]")
a("s_barrier")
stamp(1)
a("s_branch L_ld")
a.label("L_idle")
if args.pref:
    a("s_getpc_b64 s[60:61]")
    a.label("L_pc")
    a("s_and_b32 s60, s60, 0xffffff00")
    a("s_and_b32 s30, s27, 3")
    a("s_lshl_b32 s30, s30, 1")
    a("s_and_b32 s31, s28, 1")
    a("s_add_u32 s30, s30, s31")
    a("s_min_u32 s30, s30, CODE_KB")
    a("s_lshl_b32 s30, s30, 10")
    a("v_add_u32 v3, s30, v2")
    a("global_load_dwordx4 v[4:7], v3, s[60:61]")
a("s_waitcnt lgkmcnt(0)")
a("s_load_dword s29, s[24:25], 0x%x" % WS_GEN)
a("s_barrier")
a("s_waitcnt lgkmcnt(0)")
a("s_add_u32 s29, s29, 1")
a("s_branch L_w_common")
a.label("L_ld_done")
a("s_cmp_ge_u32 s28, 4")
a("s_cbranch_scc1 L_att")
a("s_barrier")
stamp(1)
a("s_waitcnt vmcnt(8)")

a.label("L_ln")
a.forget()
XV = 104
for i in range(4):
    unpack(XV + 2 * i, XV + 1 + 2 * i, 100 + i)
a("v_add_f32 v120, v104, v105")
a("v_add_f32 v121, v106, v107")
a("v_add_f32 v122, v108, v109")
a("v_add_f32 v123, v110, v111")
a("v_add_f32 v120, v120, v121")
a("v_add_f32 v122, v122, v123")
a("v_add_f32 v120, v120, v122")
a("s_mov_b32 s37, 0x05040100")
a("s_mov_b32 s38, 0x07060302")
row_allreduce("v_add_f32", ["v120"])
cross_rows_allreduce("v_add_f32", "v120", "v121")
a("v_mul_f32 v120, 0x3b000000, v120")
for i in range(8):
    a("v_sub_f32 v%d, v%d, v120" % (112 + i, XV + i))
a("v_mul_f32 v121, v112, v112")
a("v_mul_f32 v122, v113, v113")
for i in range(2, 8, 2):
    a("v_fmac_f32 v121, v%d, v%d" % (112 + i, 112 + i))
    a("v_fmac_f32 v122, v%d, v%d" % (113 + i, 113 + i))
a("v_add_f32 v121, v121, v122")
bf16r("v120", "v120")
row_allreduce("v_add_f32", ["v121"])
cross_rows_allreduce("v_add_f32", "v121", "v122")
for i in range(8):
    a("v_sub_f32 v%d, v%d, v120" % (XV + i, XV + i))
a("v_mul_f32 v121, 0x3b000000, v121")
bf16r("v121", "v121")
a("v_add_f32 v121, 0x3727c5ac, v121")
bf16r("v121", "v121")
a("v_sqrt_f32 v121, v121")
for i in range(4):
    a("v_cvt_pk_bf16_f32 v%d, v%d, v%d" % (100 + i, XV + 2 * i, XV + 2 * i + 1))
bf16r("v121", "v121")
a("v_rcp_f32 v121, v121")
for i in range(4):
    unpack(XV + 2 * i, XV + 1 + 2 * i, 100 + i)
for i in range(8):
    a("v_mul_f32 v%d, v%d, v121" % (XV + i, XV + i))
for i in range(4):
    a("v_cvt_pk_bf16_f32 v%d, v%d, v%d" % (100 + i, XV + 2 * i, XV + 2 * i + 1))
a("ds_write_b128 v2, v[100:103] offset:%d" % L_XN)
a("s_and_b32 s30, s27, 3")
a("s_lshl_b32 s30, s30, 8")
a("s_and_b32 s31, s27, 7")
a("s_lshl_b32 s31, s31, 7")
a("s_cmp_eq_u32 s28, 0")
a("s_cselect_b32 s30, s30, s31")
a("v_and_b32 v127, 1, v1")
a("v_lshl_add_u32 v127, v125, 1, v127")
a("v_lshl_add_u32 v127, v127, 4, s30")
a("s_getreg_b32 s34, hwreg(HW_REG_XCC_ID)")
a("s_lshl_b32 s33, s26, 14")
a("s_add_u32 s33, s33, 0x%x" % WS_QP)
a("s_lshl_b32 s31, s27, 9")
a("s_add_u32 s30, s33, s31")
a("s_lshl_b32 s31, s28, 17")
a("s_add_u32 s30, s30, s31")
a("v_lshlrev_b32 v3, 4, v126")
a("v_lshl_add_u32 v3, v125, 7, v3")
a("v_add_u32 v3, s30, v3")
a("s_waitcnt lgkmcnt(0)")
a("ds_read_b128 v[104:107], v127 offset:%d" % L_XN)
a("ds_read_b128 v[108:111], v127 offset:%d" % (L_XN + 128))
a("s_add_u32 s29, s29, 1")
a("v_mov_b32 v122, s34")
a("v_mov_b32 v123, s29")
stamp(2)
a("s_cmp_eq_u32 s28, 0")
a("s_cbranch_scc1 L_q0")
a("s_waitcnt vmcnt(0)")
a.label("L_q0")
for m in range(4):
    a("s_waitcnt vmcnt(%d)" % (14 - 2 * m))
    perm_pair(BR, KR, m)
a("s_waitcnt lgkmcnt(0)")
for d in range(8):
    a("v_mfma_f32_16x16x32_bf16 v[%d:%d], v[104:107], v[%d:%d], 0" % (KR + 4 * d, KR + 4 * d + 3, BR + 4 * d, BR + 4 * d + 3))
a("s_cbranch_scc0 L_pub")
for m in range(4):
    a("s_waitcnt vmcnt(%d)" % (6 - 2 * m))
    perm_pair(BR, VR, m)
for d in range(8):
    a("v_mfma_f32_16x16x32_bf16 v[%d:%d], v[108:111], v[%d:%d], v[%d:%d]" % (KR + 4 * d, KR + 4 * d + 3, BR + 4 * d, BR + 4 * d + 3, KR + 4 * d, KR + 4 * d + 3))
a.label("L_pub")
for u in range(4):
    for e in range(2):
        d = 2 * u + e
        a("v_add_f32_dpp v%d, v%d, v%d row_ror:8 row_mask:0x%x bank_mask:0xf" % (120 + e, KR + 4 * d + 1, KR + 4 * d, 1 << u))
a("s_mov_b32 exec_lo, 0x00ff00ff")
a("s_mov_b32 exec_hi, 0x00ff00ff")
if args.loadonly < 2:
    a("global_store_dwordx4 v3, v[120:123], s[24:25] sc1")
a("s_mov_b64 exec, -1")
stamp(3)

a.label("L_w_common")
a.forget()
a("s_lshl_b32 s30, s26, 9")
a("s_and_b32 s32, s27, 24")
a("s_lshl_b32 s31, s32, 4")
a("s_add_u32 s30, s30, s31")
a("s_and_b32 s36, s27, 7")
a("s_add_u32 s30, s30, s36")
a("s_lshl_b32 s30, s30, 10")
a("s_lshl_b32 s31, s28, 8")
a("s_add_u32 s30, s30, s31")
a("v_and_b32 v116, 0xf0, v2")
a("v_lshl_add_u32 v117, v125, 15, v116")
a("v_add_u32 v117, s30, v117")
a("s_add_u32 s39, s32, s26")
a("s_lshl_b32 s30, s39, 6")
a("s_and_b32 s33, s27, 1")
a("s_lshl_b32 s33, s33, 5")
a("s_add_u32 s30, s30, s33")
a("s_and_b32 s33, s27, 6")
a("s_add_u32 s30, s30, s33")
a("s_lshl_b32 s30, s30, 10")
a("s_add_u32 s30, s30, s31")
a("v_lshl_add_u32 v118, v125, 13, v116")
a("v_add_u32 v118, s30, v118")
a("s_movk_i32 s33, 0x2000")
a("s_lshl_b32 s30, s26, 14")
a("s_lshr_b32 s31, s27, 3")
a("s_lshl_b32 s31, s31, 12")
a("s_add_u32 s30, s30, s31")
a("s_lshl_b32 s31, s36, 6")
a("s_add_u32 s30, s30, s31")
a("s_add_u32 s30, s30, 0x%x" % WS_HP)
a("v_bfe_u32 v113, v1, 2, 3")
a("v_and_b32 v114, 0x30, v2")
a("v_lshl_add_u32 v113, v113, 9, v114")
a("v_add_u32 v113, s30, v113")
a("s_lshl_b32 s30, s26, 17")
a("s_lshl_b32 s31, s27, 7")
a("s_add_u32 s30, s30, s31")
a("s_lshl_b32 s31, s28, 15")
a("s_add_u32 s30, s30, s31")
a("s_add_u32 s30, s30, 0x%x" % WS_O)
a("v_lshlrev_b32 v115, 12, v124")
a("v_lshl_add_u32 v115, v126, 4, v115")
a("v_add_u32 v115, s30, v115")
a("s_mul_i32 s30, s28, %d" % (8 * 144))
a("v_mul_u32_u24 v119, 144, v124")
a("v_lshl_add_u32 v119, v126, 4, v119")
a("v_add_u32 v119, s30, v119")
a("v_bfe_u32 v120, v1, 1, 3")
a("v_mul_u32_u24 v120, 144, v120")
a("v_lshl_add_u32 v120, v125, 5, v120")
a("v_and_b32 v121, 16, v2")
a("v_add_u32 v120, v121, v120")
a("v_mov_b32 v33, 0")
a("v_lshlrev_b32 v22, 3, v125")
OR_ = 36
OSLOT = (8, 115, 0)
HSLOT = (4, 113, 0)
wl = []
wl.append(["global_load_dwordx4 v[%d:%d], v118, s[18:19]%s" % (OR_, OR_ + 3, NT)])
wl.append(["global_load_dwordx4 v[%d:%d], v118, s[18:19] offset:1024%s" % (OR_ + 4, OR_ + 7, NT)])
for i in range(4):
    wl.append(["global_load_dwordx4 v[%d:%d], v117, s[12:13]%s" % (OR_ + 8 + 4 * i, OR_ + 8 + 4 * i + 3, NT)] + (["v_add_u32 v117, s33, v117"] if i < 3 else []))
PRE = "nt" if args.ont else "sc1"
a("s_cmp_lg_u32 s36, s26")
a("s_cbranch_scc1 L_nofpre")
a("s_lshl_b32 s30, s27, 10")
a("s_add_u32 s30, s30, 0x%x" % WS_F)
a("v_add_u32 v16, s30, v2")
pload((12, 16, 0))
a.label("L_nofpre")
for r in range(OR_, OR_ + 8):
    a("v_mov_b32 v%d, 0" % r)
a("v_mov_b32 v12, 0") if False else None
a("s_cmp_lt_u32 s39, 28")
a("s_cselect_b32 s34, 2, 9")
a("s_barrier")
stamp(4)
a("s_cmp_lg_u32 s28, s34")
a("s_cbranch_scc1 L_noh1")
pload(HSLOT)
a.label("L_noh1")
a("s_cmp_ge_u32 s39, 28")
a("s_barrier")
stamp(6)
if args.opre == 1:
    pload(OSLOT, PRE)
a("s_cbranch_scc1 L_now2")
for x in wl[:2]:
    for y in x: a(y)
a.label("L_now2")
for x in wl[2:]:
    for y in x: a(y)
if args.opre == 0:
    pload(OSLOT, PRE)
if args.bw < 4:
    a("s_barrier")
a("s_cmp_lg_u32 s28, s34")
a("s_cbranch_scc1 L_noh2")
a("s_waitcnt vmcnt(7)")
a("v_cmp_ne_u32 vcc, s29, v7")
a("s_cbranch_vccz L_pollh_done")
poll("pollh", [HSLOT], "s65")
row_allreduce("v_add_f32", ["v4", "v5"], (8, 4))
swap_reduce("v_add_f32", "v4", "v18", 16)
swap_reduce("v_add_f32", "v5", "v19", 16)
a("v_cvt_pk_bf16_f32 v6, v4, v5")
unpack(4, 5, 6)
for r in (4, 5):
    a("v_mul_f32 v%d, 0x%x, v%d" % (r + 2, LOG2E | 0x80000000, r))
for r in (4, 5):
    a("v_exp_f32 v%d, v%d" % (r + 2, r + 2))
for r in (4, 5):
    a("v_add_f32 v%d, 1.0, v%d" % (r + 2, r + 2))
for r in (4, 5):
    a("v_rcp_f32 v%d, v%d" % (r + 2, r + 2))
for r in (4, 5):
    a("v_mul_f32 v%d, v%d, v%d" % (r, r, r + 2))
a("v_cvt_pk_bf16_f32 v6, v4, v5")
unpack(18, 19, 6)
a("v_lshrrev_b32 v114, 1, v114")
a("ds_write_b64 v114, v[18:19] offset:%d" % L_H)
a("s_waitcnt lgkmcnt(0)")
a.label("L_noh2")
a.forget()
a("s_cmp_lt_u32 s39, 28")
a("s_cselect_b32 s30, -1, 0")
a("s_barrier")
a("ds_read_b64 v[20:21], v22 offset:%d" % L_H)
a("ds_read_b128 v[4:7], v33 offset:%d" % L_F)
stamp(7)
UR = 60
OA = list(range(24, 32))
tail = 1 if args.opre == 0 else 0
a("s_waitcnt vmcnt(%d) lgkmcnt(0)" % (4 + tail))
a("v_or3_b32 v4, v4, v5, v6")
a("v_or_b32 v4, v4, v7")
a("v_and_b32 v20, s30, v20")
a("v_and_b32 v21, s30, v21")
for i in range(2):
    for c in range(4):
        unpack(UR + 8 * i + 2 * c, UR + 1 + 8 * i + 2 * c, OR_ + 4 * i + c)
a("v_readfirstlane_b32 s33, v4")
for c in range(8):
    a("v_mul_f32 v%d, v%d, v20" % (OA[c], UR + c))
for c in range(8):
    a("v_fmac_f32 v%d, v%d, v21" % (OA[c], UR + 8 + c))
for i in range(2, 6):
    a("s_waitcnt vmcnt(%d)" % (5 - i + tail))
    if i == 5:
        pload(OSLOT)
    for c in range(4):
        unpack(UR + 8 * i + 2 * c, UR + 1 + 8 * i + 2 * c, OR_ + 4 * i + c)
stamp(8)
poll("poll2", [OSLOT], "s64", issued=True)
a("ds_write_b128 v119, v[8:11] offset:%d" % L_G)
stamp(9)
a("s_add_u32 s29, s29, 1")
a("s_cmp_lg_u32 s33, 0")
a("s_waitcnt lgkmcnt(0)")
a("s_barrier")
for i in range(4):
    a("ds_read_b128 v[%d:%d], v120 offset:%d" % (4 + 4 * i, 7 + 4 * i, L_G + 1152 * i))
a("s_waitcnt lgkmcnt(0)")
a("v_max3_f32 v20, v6, v10, v14")
a("v_max_f32 v20, v20, v18")
row_allreduce("v_max_f32", ["v20"], (8, 4, 2))
for i in range(4):
    a("v_sub_f32 v%d, v%d, v20" % (6 + 4 * i, 6 + 4 * i))
for i in range(4):
    a("v_exp_f32 v%d, v%d" % (6 + 4 * i, 6 + 4 * i))
a("v_mul_f32 v4, v4, v6")
a("v_mul_f32 v5, v5, v6")
a("v_add_f32 v6, v6, v10")
for i in range(1, 4):
    a("v_fmac_f32 v4, v%d, v%d" % (4 + 4 * i, 6 + 4 * i))
    a("v_fmac_f32 v5, v%d, v%d" % (5 + 4 * i, 6 + 4 * i))
    if i == 1:
        a("v_add_f32 v21, v14, v18")
    if i == 2:
        a("v_add_f32 v6, v6, v21")
row_allreduce("v_add_f32", ["v6", "v4", "v5"], (8, 4, 2))
a("v_rcp_f32 v6, v6")
a("v_mul_f32 v4, v4, v6")
a("v_mul_f32 v5, v5, v6")
a("v_cvt_pk_bf16_f32 v8, v4, v5")
a("v_mov_b32_dpp v20, v8 quad_perm:[0,0,2,2] %s" % DPPALL)
a("v_mov_b32_dpp v21, v8 quad_perm:[1,1,3,3] %s" % DPPALL)
unpack(4, 5, 20)
unpack(6, 7, 21)
if args.pk:
    for i in range(4):
        pr = 4 + (i & ~1)
        sel = "op_sel:[0,1,0] op_sel_hi:[1,1,1]" if i & 1 else "op_sel_hi:[1,0,1]"
        for c in range(0, 8, 2):
            w = UR + 16 + 8 * i + c
            a("v_pk_fma_f32 v[%d:%d], v[%d:%d], v[%d:%d], v[%d:%d] %s" % (OA[c], OA[c + 1], w, w + 1, pr, pr + 1, OA[c], OA[c + 1], sel))
else:
    for i in range(4):
        for c in range(8):
            a("v_fmac_f32 v%d, v%d, v%d" % (OA[c], UR + 16 + 8 * i + c, 4 + i))
transpose_reduce8(OA)
a("v_mov_b32 v27, s29")
if args.local:
    a("s_cbranch_scc1 L_out_remote")
    a("global_store_dwordx4 v115, v[24:27], s[24:25]")
    stamp(10)
    a("s_branch L_fin")
    a.label("L_out_remote")
a("global_store_dwordx4 v115, v[24:27], s[24:25] sc1")
stamp(10)
a("s_branch L_fin")

a.label("L_att")
a.forget()
QG = 100
a("v_add_u32 v3, s30, v2")
for j in range(8):
    if args.throttle:
        a("s_waitcnt vmcnt(%d)" % (args.throttle - 1))
    a("global_load_dwordx4 v[%d:%d], v3, s[8:9]%s" % (VR + 4 * j, VR + 4 * j + 3, NT))
    if j < 7:
        a("v_add_u32 v3, s32, v3")
    if j == 0:
        a("s_lshl_b32 s30, s26, 14")
        a("s_lshl_b32 s31, s36, 12")
        a("s_add_u32 s30, s30, s31")
        a("s_add_u32 s30, s30, 0x%x" % WS_QP)
        a("v_and_b32 v120, 0x1f0, v2")
        a("v_lshrrev_b32 v121, 5, v1")
        a("v_lshl_add_u32 v120, v121, 11, v120")
        a("v_add_u32 v120, s30, v120")
        a("v_bfe_u32 v118, v1, 3, 2")
        a("v_lshlrev_b32 v119, 4, v126")
        a("v_lshl_add_u32 v119, v118, 2, v119")
        a("v_lshl_add_u32 v119, v121, 7, v119")
        a("s_lshl_b32 s30, s36, 8")
        a("v_add_u32 v119, s30, v119")
        a("s_lshl_b32 s30, s26, 5")
        a("s_add_u32 s30, s30, s27")
        a("s_lshl_b32 s30, s30, 12")
        a("s_lshl_b32 s31, s36, 10")
        a("s_add_u32 s30, s30, s31")
        a("s_add_u32 s30, s30, 0x%x" % WS_O)
        a("v_add_u32 v0, s30, v2")
        a("s_mov_b32 s37, 0x05040100")
        a("s_mov_b32 s38, 0x07060302")
        a("s_mov_b32 s39, 0x%x" % LOG2E)
        a("s_getreg_b32 s34, hwreg(HW_REG_XCC_ID)")
        a("s_lshl_b32 s31, s36, 11")
        a("s_add_u32 s31, s31, %d" % L_O)
        a("v_and_b32 v121, 15, v1")
        a("v_lshlrev_b32 v121, 2, v121")
        a("v_lshl_add_u32 v121, v125, 9, v121")
        a("v_add_u32 v121, s31, v121")
        a("s_lshl_b32 s30, s36, 2")
        a("v_lshl_add_u32 v118, v123, 4, s30")
        a("v_lshl_add_u32 v122, v125, 4, s30")
        a("s_lshl_b32 s31, s36, 9")
        a("v_lshl_add_u32 v123, v1, 3, s31")
stamp(2)
if args.loadonly:
    a("s_waitcnt vmcnt(0)")
    stamp(4)
a("s_waitcnt lgkmcnt(0)")
a("s_add_u32 s29, s29, 1")
if args.loadonly:
    a("s_waitcnt vmcnt(0)")
    a("s_branch L_fin")
if not args.b1pos:
    a("s_barrier")
qslots = [(QG + 4 * rb, 120, 512 * rb) for rb in range(4)]
for m in range(5):
    if m == args.gd:
        if args.b1pos:
            a("s_barrier")
        for sl in qslots:
            pload(sl)
        stamp(3)
        if m > 0:
            perm_pair(BR, VR, m - 1)
    if m == 4:
        break
    if m == args.bw:
        a("s_barrier")
    a("s_waitcnt vmcnt(%d)" % (6 - 2 * m + (4 if m >= args.gd else 0)))
    if m != args.gd - 1:
        perm_pair(BR, VR, m)
stamp(4)
poll("pollq", qslots, "s65", issued=True)
stamp(5)
a("v_add_f32 v%d, v%d, v%d" % (QG, QG, QG + 4))
a("v_add_f32 v%d, v%d, v%d" % (QG + 1, QG + 1, QG + 5))
a("v_add_f32 v%d, v%d, v%d" % (QG + 8, QG + 8, QG + 12))
a("v_add_f32 v%d, v%d, v%d" % (QG + 9, QG + 9, QG + 13))
a("v_add_f32 v%d, v%d, v%d" % (QG, QG, QG + 8))
a("v_add_f32 v%d, v%d, v%d" % (QG + 1, QG + 1, QG + 9))
a("v_cvt_pk_bf16_f32 v%d, v%d, v%d" % (QG, QG, QG + 1))
a("ds_write_b32 v119, v%d offset:%d" % (QG, L_Q))
a("v_xor_b32 v116, s34, v%d" % (QG + 2))
a("v_xor_b32 v117, s34, v%d" % (QG + 6))
a("v_xor_b32 v119, s34, v%d" % (QG + 10))
a("v_xor_b32 v120, s34, v%d" % (QG + 14))
a("s_waitcnt lgkmcnt(0)")
a("s_barrier")
a("ds_read_b128 v[100:103], v127 offset:%d" % L_Q)
a("v_or3_b32 v116, v116, v117, v119")
a("v_or_b32 v116, v116, v120")
a("v_cmp_ne_u32 vcc, 0, v116")
a("s_or_b32 s31, vcc_lo, vcc_hi")
a("v_mov_b32 v116, s30")
a("v_mov_b32 v117, s31")
a("s_lshl_b32 s31, s36, 4")
a("v_mov_b32 v120, s31")
a("v_mov_b32 v119, 0")
a("s_waitcnt lgkmcnt(0)")
stamp(6)
DR = VR
for j in range(8):
    a("v_mfma_f32_16x16x32_bf16 v[%d:%d], v[%d:%d], v[100:103], 0" % (DR + 4 * j, DR + 4 * j + 3, KR + 4 * j, KR + 4 * j + 3))
a("ds_write_b32 v116, v117 offset:%d" % L_F)
S = list(range(104, 112))
for j in range(8):
    a("v_mov_b32_dpp v%d, v%d quad_perm:[0,0,0,0] %s" % (S[j], DR + 4 * j, DPPALL))
for b in range(1, 4):
    for j in range(8):
        a("v_add_f32_dpp v%d, v%d, v%d quad_perm:[%d,%d,%d,%d] %s" % (S[j], DR + 4 * j + b, S[j], b, b, b, b, DPPALL))
T = list(range(112, 116))
for m in range(4):
    a("v_cvt_pk_bf16_f32 v%d, v%d, v%d" % (T[m], S[2 * m], S[2 * m + 1]))
for m in range(4):
    unpack(S[2 * m], S[2 * m + 1], T[m])
for j in range(8):
    a("v_mul_f32 v%d, 0x%x, v%d" % (S[j], SCALE, S[j]))
for m in range(4):
    a("v_cvt_pk_bf16_f32 v%d, v%d, v%d" % (T[m], S[2 * m], S[2 * m + 1]))
for m in range(4):
    unpack(S[2 * m], S[2 * m + 1], T[m])
a("v_max3_f32 v116, v%d, v%d, v%d" % (S[0], S[1], S[2]))
a("v_max3_f32 v117, v%d, v%d, v%d" % (S[3], S[4], S[5]))
a("v_max3_f32 v116, v116, v%d, v%d" % (S[6], S[7]))
a("v_max_f32 v116, v116, v117")
a("v_mov_b32 v117, v116")
a("v_mov_b32 v%d, 0x3f803f80" % VR)
a("v_mov_b32 v%d, 0x3f803f80" % (VR + 1))
a("v_permlane16_swap_b32 v116, v117")
a("v_max_f32 v116, v116, v117")
a("v_mov_b32 v117, v116")
a("v_mov_b32 v%d, 0x3f803f80" % (VR + 2))
a("v_mov_b32 v%d, 0x3f803f80" % (VR + 3))
a("v_permlane32_swap_b32 v116, v117")
a("v_max_f32 v116, v116, v117")
a("v_mul_f32 v116, s39, v116")
for j in range(8):
    a("v_fma_f32 v%d, v%d, s39, -v116" % (S[j], S[j]))
for j in range(8):
    a("v_exp_f32 v%d, v%d" % (S[j], S[j]))
a("ds_write_b32 v118, v116 offset:%d" % L_M)
for m in range(4):
    a("v_cvt_pk_bf16_f32 v%d, v%d, v%d" % (T[m], S[2 * m], S[2 * m + 1]))
a("v_mfma_f32_16x16x32_bf16 v[100:103], v[112:115], v[%d:%d], 0" % (VR, VR + 3))
for d in range(8):
    a("v_mfma_f32_16x16x32_bf16 v[%d:%d], v[112:115], v[%d:%d], 0" % (KR + 4 * d, KR + 4 * d + 3, BR + 4 * d, BR + 4 * d + 3))
a("ds_write_b32 v122, v100 offset:%d" % L_L)
for d in range(0, 8, 2):
    a("ds_write2_b32 v121, v%d, v%d offset0:%d offset1:%d" % (KR + 4 * d, KR + 4 * d + 4, 16 * d, 16 * d + 16))
stamp(7)
a("s_waitcnt lgkmcnt(0)")
a("s_barrier")
a("ds_read_b128 v[40:43], v120 offset:%d" % L_M)
a("ds_read_b128 v[44:47], v120 offset:%d" % L_L)
for w in range(4):
    a("ds_read_b64 v[%d:%d], v123 offset:%d" % (48 + 2 * w, 49 + 2 * w, L_O + 2048 * w))
a("ds_read_b128 v[60:63], v119 offset:%d" % L_F)
a("v_mov_b32 v59, s29")
a("s_waitcnt lgkmcnt(5)")
a("v_max3_f32 v64, v40, v41, v42")
a("v_max_f32 v64, v64, v43")
for w in range(4):
    a("v_sub_f32 v%d, v%d, v64" % (40 + w, 40 + w))
for w in range(4):
    a("v_exp_f32 v%d, v%d" % (40 + w, 40 + w))
a("s_waitcnt lgkmcnt(0)")
a("v_or3_b32 v60, v60, v61, v62")
a("v_mul_f32 v65, v40, v44")
a("v_or_b32 v60, v60, v63")
for w in range(1, 4):
    a("v_fmac_f32 v65, v%d, v%d" % (40 + w, 44 + w))
a("v_cmp_ne_u32 vcc, 0, v60")
a("v_mul_f32 v56, v40, v48")
a("v_mul_f32 v57, v40, v49")
a("v_rcp_f32 v66, v65")
a("v_log_f32 v58, v65")
for w in range(1, 4):
    a("v_fmac_f32 v56, v%d, v%d" % (40 + w, 48 + 2 * w))
    a("v_fmac_f32 v57, v%d, v%d" % (40 + w, 49 + 2 * w))
a("v_add_f32 v58, v58, v64")
a("v_mul_f32 v56, v56, v66")
a("v_mul_f32 v57, v57, v66")
if args.local:
    a("s_cbranch_vccnz L_o_remote")
    a("global_store_dwordx4 v0, v[56:59], s[24:25]")
    a("s_branch L_o_done")
    a.label("L_o_remote")
a("global_store_dwordx4 v0, v[56:59], s[24:25] sc1")
a.label("L_o_done")
stamp(9)
a("s_cmp_lg_u32 s36, 0")
a("s_cbranch_scc1 L_fin")
a("s_add_u32 s29, s29, 1")
a("s_lshl_b32 s30, s27, 10")
a("s_add_u32 s30, s30, 0x%x" % WS_F)
a("v_add_u32 v36, s30, v2")
a("s_lshl_b32 s31, s26, 7")
a("v_add_u32 v37, s31, v36")
a("s_lshr_b32 s30, s27, 3")
a("s_lshl_b32 s30, s30, 8")
a("s_and_b32 s31, s27, 1")
a("s_lshl_b32 s31, s31, 7")
a("s_add_u32 s30, s30, s31")
a("s_and_b32 s31, s27, 6")
a("s_lshl_b32 s31, s31, 1")
a("s_add_u32 s30, s30, s31")
a("v_lshl_add_u32 v38, v126, 4, s30")
a("s_and_b32 s32, s27, 7")
FSLOT = (20, 36, 0)
a("global_load_dword v39, v38, s[4:5]")
a("s_barrier")
poll("poll3", [(4 + 4 * i, 0, 1024 * i) for i in range(4)], "s64")
stamp(11)
a("v_add_f32 v4, v4, v8")
a("v_add_f32 v5, v5, v9")
a("v_add_f32 v12, v12, v16")
a("v_add_f32 v13, v13, v17")
a("v_add_f32 v4, v4, v12")
a("v_add_f32 v5, v5, v13")
pair_reduce_pp(4, 5)
a("s_mov_b64 exec, 0xff")
a("global_store_dwordx4 v37, v[4:7], s[24:25] sc1")
a("s_mov_b64 exec, -1")
a("s_cmp_lg_u32 s32, s26")
a("s_cbranch_scc1 L_fin")
unpack(34, 35, 39)
poll("poll4", [FSLOT])
stamp(12)
pair_reduce_pp(20, 21)
a("v_add_f32 v20, v20, v34")
a("v_add_f32 v21, v21, v35")
a("v_cvt_pk_bf16_f32 v20, v20, v21")
a("s_mov_b64 exec, 0xff")
a("global_store_dword v38, v20, s[20:21]")
a("s_cmp_lg_u32 s2, 0")
a("s_cbranch_scc1 L_fin")
a("global_store_dword v119, v23, s[24:25] offset:%d" % WS_GEN)
a.label("L_fin")
stamp(13)
stamp_flush(14)
a.label("L_end")
a("s_endpgm")
a.label("L_code_end")

nv = a.maxv + 1
acc = (nv + 3) // 4 * 4
out = HEADER
out += "; @launch grid=(256,1,1) block=(512,1,1) lds=%d\n" % args.lds
out += '.amdgcn_target "amdgcn-amd-amdhsa--gfx950"\n.text\n.globl %s_kernel\n.p2align 8\n.type %s_kernel,@function\n%s_kernel:\n' % (NAME, NAME, NAME)
out += a.text()
if args.pref:
    out += ".fill 256, 4, 0xbf800000\n"
out += """.section .rodata,"a"
.p2align 6
.amdhsa_kernel %s_kernel
  .amdhsa_next_free_vgpr %d
  .amdhsa_next_free_sgpr %d
  .amdhsa_accum_offset %d
  .amdhsa_group_segment_fixed_size 0
  .amdhsa_kernarg_size 88
  .amdhsa_user_sgpr_count 2
  .amdhsa_user_sgpr_kernarg_segment_ptr 1
  .amdhsa_system_sgpr_workgroup_id_x 1
.end_amdhsa_kernel
""" % (NAME, nv, max(a.maxs + 1, 16), acc)
if args.pref:
    import subprocess, re
    open("_p.s", "w").write(out.replace("CODE_KB", "7"))
    subprocess.check_call(["clang", "-x", "assembler", "-target", "amdgcn-amd-amdhsa", "-mcpu=gfx950", "-c", "_p.s", "-o", "_p.o"])
    d = subprocess.check_output(["llvm-objdump", "-d", "--mcpu=gfx950", "_p.o"], text=True)
    pc = int(re.search(r"^([0-9a-f]+) <L_pc>", d, re.M).group(1), 16) & ~0xff
    end = int(re.search(r"^([0-9a-f]+) <L_code_end>", d, re.M).group(1), 16) if re.search(r"<L_code_end>", d) else None
    if end is None:
        end = int(re.search(r"^([0-9a-f]+) <L_end>", d, re.M).group(1), 16) + 4
    kb = (end - pc - 1) // 1024
    assert kb <= 7
    print("code end 0x%x, last piece %d" % (end, kb), file=sys.stderr)
    out = out.replace("CODE_KB", str(kb))
open(args.out, "w").write(out)
print("vgprs", nv, "sgprs", a.maxs + 1, "nops", a.nops, "lines", len(a.lines), file=sys.stderr)
```
